```python
import torch

def _softmax(x, axis=-1):
    return torch.softmax(x, dim=axis)
def _gelu(x):
    return torch.nn.functional.gelu(x, approximate="tanh")
def _silu(x):
    return torch.nn.functional.silu(x)
def _sigmoid(x):
    return torch.sigmoid(x)
def _layernorm(x, axis=-1, eps=1e-5):
    m = x.mean(dim=axis, keepdim=True)
    v = x.var(dim=axis, keepdim=True, unbiased=False)
    return (x - m) / torch.sqrt(v + eps)
def _scatter_add(tgt, idx, src, axis=0):
    return tgt.clone().index_add_(axis, idx, src)
def _segment_sum(src, seg, n):
    out = torch.zeros((n,) + src.shape[1:], dtype=src.dtype)
    return out.index_add_(0, seg, src)
def _pad(x, pw):
    flat = tuple(v for pair in reversed(pw) for v in pair)
    return torch.nn.functional.pad(x, flat)

kernel_name = 'recurrent_scan__ssm_conv_s4__mixer_channel_mlp__prompt'

def setup_inputs():

    _w = (lambda a: (lambda t: t.to(torch.bfloat16) if t.is_floating_point() else t)(torch.as_tensor(a)))
    def _A_setup():
        B, L, D, N = 1, 2048, 640, 192
        A_re = -(lambda _x: torch.exp(torch.as_tensor(_x)))((lambda *s: torch.randn(*s, dtype=torch.bfloat16) * 3.2)(D, N))
        A_im = torch.pi * (lambda *s: torch.randn(*s, dtype=torch.bfloat16) * 0.05)(D, N)
        B_re = (lambda *s: torch.randn(*s, dtype=torch.bfloat16) * 0.1)(D, N)
        B_im = (lambda *s: torch.randn(*s, dtype=torch.bfloat16) * 0.1)(D, N)
        C_re = (lambda *s: torch.randn(*s, dtype=torch.bfloat16) * 0.1)(D, N)
        C_im = (lambda *s: torch.randn(*s, dtype=torch.bfloat16) * 0.1)(D, N)
        log_dt = (lambda *s: torch.randn(*s, dtype=torch.bfloat16) * 0.05)(D) * 0.5 - 4.0
        Dskip = (lambda *s: torch.randn(*s, dtype=torch.bfloat16) * 0.05)(D)
        return {
            "u": _w((lambda *s: torch.randn(*s, dtype=torch.bfloat16) * 0.05)(B, L, D)),
            "A_re": _w(A_re),
            "A_im": _w(A_im),
            "B_re": _w(B_re),
            "B_im": _w(B_im),
            "C_re": _w(C_re),
            "C_im": _w(C_im),
            "log_dt": _w(log_dt),
            "Dskip": _w(Dskip),
        }
    _A_in = _A_setup()

    def _B_setup():
        B, S, D, F = 1, 2048, 640, 1536
        return {
            "x": _w((lambda *s: torch.randn(*s, dtype=torch.bfloat16) * 0.05)(B, S, D)),
            "w1": _w((lambda *s: torch.randn(*s, dtype=torch.bfloat16) * 3.2)(D, F) * (D ** -0.5)),
            "b1": _w((lambda *s: torch.randn(*s, dtype=torch.bfloat16) * 1.6)(F)),
            "w2": _w((lambda *s: torch.randn(*s, dtype=torch.bfloat16) * 0.05)(F, D) * (F ** -0.5)),
            "b2": _w((lambda *s: torch.randn(*s, dtype=torch.bfloat16) * 0.1)(D)),
        }
    _B_in = _B_setup()

    return {
        "A_u": _A_in["u"],
        "A_A_re": _A_in["A_re"],
        "A_A_im": _A_in["A_im"],
        "A_B_re": _A_in["B_re"],
        "A_B_im": _A_in["B_im"],
        "A_C_re": _A_in["C_re"],
        "A_C_im": _A_in["C_im"],
        "A_log_dt": _A_in["log_dt"],
        "A_Dskip": _A_in["Dskip"],
        "B_x": _B_in["x"],
        "B_w1": _B_in["w1"],
        "B_b1": _B_in["b1"],
        "B_w2": _B_in["w2"],
        "B_b2": _B_in["b2"],
    }

def reference(A_u, A_A_re, A_A_im, A_B_re, A_B_im, A_C_re, A_C_im, A_log_dt, A_Dskip, B_x, B_w1, B_b1, B_w2, B_b2):
    def _A_ref(u, A_re, A_im, B_re, B_im, C_re, C_im, log_dt, Dskip):
        Bsz, L, D = u.shape
        dt = torch.exp(log_dt)[:, None]
        A = A_re + 1j * A_im
        Bc = B_re + 1j * B_im
        Cc = C_re + 1j * C_im
        logdA = dt * A
        dB = dt * Bc
        l = (lambda x, dt: x.to(dt))(torch.arange(L), A_re.dtype)
        P = torch.exp(logdA[:, :, None] * l[None, None, :])
        K = torch.einsum("dn,dnl,dn->dl", Cc, P, dB).real
        L2 = 2 * L
        Kp = _pad(K, ((0, 0), (0, L)))
        up = (lambda x, *d: x.permute(*d))(u, 0, 2, 1)
        up = _pad(up, ((0, 0), (0, 0), (0, L)))
        Kf = (lambda x, axes=(-2,-1): torch.fft.rfft2(x.float(), dim=axes))(Kp[:, None, :], axes=(-2, -1))
        Uf = (lambda x, axes=(-2,-1): torch.fft.rfft2(x.float(), dim=axes))(up[:, :, None, :], axes=(-2, -1))
        Yf = Uf * Kf[None, :, :, :]
        y = (lambda x, s, axes=(-2,-1): torch.fft.irfft2(x, s=s, dim=axes).to(torch.bfloat16))(Yf, (1, L2), axes=(-2, -1))[:, :, 0, :L]
        y = (lambda x, *d: x.permute(*d))(y, 0, 2, 1) + u * Dskip[None, None, :]
        return y

    def _B_ref(x, w1, b1, w2, b2):
        y = _layernorm(x, axis=-1)
        h = _gelu(torch.einsum("bsd,df->bsf", y, w1) + b1)
        return torch.einsum("bsf,fd->bsd", h, w2) + b2

    x = A_u
    xn = _layernorm(x, axis=-1)
    s = _A_ref(xn, A_A_re, A_A_im, A_B_re, A_B_im, A_C_re, A_C_im, A_log_dt, A_Dskip)
    g = _silu(_B_ref(xn, B_w1, B_b1, B_w2, B_b2))
    return x + s * g
```

```python
KNAME = "recurrent_scan__ssm_conv_s4__mixer_channel_mlp__prompt"

class Asm:
    def __init__(self):
        self.lines = []
        self.nlabel = 0
    def __call__(self, s):
        for l in s.split("\n"):
            self.lines.append("    " + l.strip() if not l.strip().endswith(":") else l.strip())
    def label(self, base="L"):
        self.nlabel += 1
        return f".{base}_{self.nlabel}"
    def text(self):
        return "\n".join(self.lines) + "\n"

def kernel_text(name, body, vgpr, sgpr=102, accum=None):
    if accum is None:
        accum = (vgpr + 3) // 4 * 4
    return (f".text\n.globl {name}\n.p2align 8\n.type {name},@function\n{name}:\n" + body +
            f""".section .rodata,"a"
.p2align 6
.amdhsa_kernel {name}
  .amdhsa_next_free_vgpr {vgpr}
  .amdhsa_next_free_sgpr {sgpr}
  .amdhsa_accum_offset {accum}
  .amdhsa_group_segment_fixed_size 0
  .amdhsa_kernarg_size 136
  .amdhsa_user_sgpr_count 2
  .amdhsa_user_sgpr_kernarg_segment_ptr 1
  .amdhsa_system_sgpr_workgroup_id_x 1
  .amdhsa_float_denorm_mode_32 3
  .amdhsa_float_denorm_mode_16_64 3
.end_amdhsa_kernel
""")

def file_text(header_lines, kernels):
    return "\n".join(header_lines) + '\n.amdgcn_target "amdgcn-amd-amdhsa--gfx950"\n' + "".join(kernels)
```

```python
import re

TRANS = ("v_exp_f32", "v_log_f32", "v_rcp_f32", "v_rsq_f32", "v_sqrt_f32", "v_sin_f32", "v_cos_f32",
         "v_exp_f16", "v_rcp_f16", "v_rcp_iflag_f32")

def regs_of(tok):
    tok = tok.strip()
    tok = tok.lstrip("-")
    if tok.startswith("abs(") or tok.startswith("|"):
        tok = tok.replace("abs(", "").replace(")", "").replace("|", "")
    m = re.fullmatch(r"([vsa])\[(\d+):(\d+)\]", tok)
    if m:
        return {(m.group(1), i) for i in range(int(m.group(2)), int(m.group(3)) + 1)}
    m = re.fullmatch(r"([vsa])(\d+)", tok)
    if m:
        return {(m.group(1), int(m.group(2)))}
    if tok in ("vcc", "vcc_lo", "vcc_hi"): return {("x", "vcc")}
    if tok in ("exec", "exec_lo", "exec_hi"): return {("x", "exec")}
    if tok == "m0": return {("x", "m0")}
    return set()

class Ins:
    def __init__(self, text):
        self.text = text
        t = text.split(";")[0].split("//")[0].strip()
        self.label = t[:-1] if t.endswith(":") else None
        self.op = "" if (self.label or not t) else t.split()[0]
        self.directive = self.op.startswith(".")
        rest = t[len(self.op):].strip() if self.op else ""
        ops = []
        depth = 0; cur = ""
        for ch in rest:
            if ch == "[": depth += 1
            if ch == "]": depth -= 1
            if ch == "," and depth == 0:
                ops.append(cur.strip()); cur = ""
            else: cur += ch
        if cur.strip(): ops.append(cur.strip())
        self.mods = ""
        if ops:
            parts = ops[-1].split(None, 1)
            ops[-1] = parts[0]
            self.mods = parts[1] if len(parts) > 1 else ""
        self.ops = ops
        op = self.op
        self.mfma = op.startswith("v_mfma")
        self.valu = op.startswith("v_") and not self.mfma
        self.trans = any(op.startswith(x) for x in TRANS)
        self.dot = op.startswith("v_dot")
        self.perml = op.startswith("v_permlane")
        self.dpp = "_dpp" in op or "row_" in self.mods or "quad_perm" in self.mods
        self.rdlane = op.startswith("v_readlane") or op.startswith("v_readfirstlane") or op.startswith("v_writelane")
        self.vmem = op.startswith("buffer_") or op.startswith("global_")
        self.ds = op.startswith("ds_")
        self.salu = op.startswith("s_") and not op.startswith(("s_load", "s_buffer_load", "s_waitcnt", "s_nop", "s_barrier", "s_branch", "s_cbranch", "s_endpgm", "s_sleep", "s_setprio", "s_memtime", "s_memrealtime"))
        self.branch = op.startswith("s_cbranch") or op == "s_branch"
        self.wr = set(); self.rd = set()
        R = [regs_of(o) for o in ops]
        self.lds_dma = (self.vmem and (" lds" in (" " + self.mods) or "load_lds" in op))
        if self.mfma:
            self.wr = R[0]; self.A = R[1]; self.B = R[2]; self.C = R[3]; self.rd = R[1] | R[2] | R[3]
            self.passes = 16 if op.endswith("x2_f32") else 8 if "32x32" in op else 4
        elif self.valu:
            if op.startswith("v_cmp"):
                self.wr = R[0]; self.rd = set().union(*R[1:])
            elif self.perml and "swap" in op:
                self.wr = R[0] | R[1]; self.rd = R[0] | R[1]
            elif op.startswith(("v_add_co", "v_sub_co", "v_addc_co", "v_subb_co")):
                self.wr = R[0] | R[1]; self.rd = set().union(*R[2:])
            else:
                self.wr = R[0]; self.rd = set().union(*R[1:]) if len(R) > 1 else set()
                if op.startswith(("v_fmac", "v_dot2c", "v_writelane")) or self.dpp: self.rd |= R[0]
                if op.startswith("v_cndmask") and len(R) == 3: self.rd |= {("x", "vcc")}
        elif self.vmem:
            if self.lds_dma:
                self.rd = set().union(*R) | {("x", "m0")}
            elif "load" in op:
                self.wr = R[0]; self.rd = set().union(*R[1:])
            elif "atomic" in op or "store" in op:
                self.rd = set().union(*R)
                self.sdata = R[0] if op.startswith("buffer_") else R[1]
                self.wide = ("x3" in op or "x4" in op)
        elif self.ds:
            if op.startswith(("ds_read", "ds_bpermute", "ds_permute", "ds_swizzle")) or "_rtn" in op:
                self.wr = R[0]; self.rd = set().union(*R[1:])
            else:
                self.rd = set().union(*R)
        elif self.salu:
            if op.startswith("s_cmp") or op.startswith("s_bitcmp"):
                self.rd = set().union(*R)
            else:
                self.wr = R[0] if R else set(); self.rd = set().union(*R[1:]) if len(R) > 1 else set()
                if "saveexec" in op: self.wr |= {("x", "exec")}
        self.states = 0 if (self.label or self.directive or not self.op) else 1
        if op == "s_nop": self.states = int(ops[0], 0) + 1

def vg(s): return {r for r in s if r[0] in "va"}
def sg(s): return {r for r in s if r[0] == "s" or r == ("x", "vcc")}

def need(p, c):
    n = 0
    if p.valu:
        w = vg(p.wr)
        if w:
            if c.mfma and (w & c.rd): n = max(n, 3 if p.dot else 2)
            if c.valu and c.dpp and (w & c.rd): n = max(n, 2)
            if c.perml and (w & c.rd): n = max(n, 2)
            if c.rdlane and (w & c.rd): n = max(n, 1)
            if p.trans and (c.valu or c.mfma) and (w & c.rd): n = max(n, 1)
            if p.dot:
                if c.op == p.op:
                    srcab = set().union(*[regs_of(o) for o in c.ops[1:3]])
                    if w & srcab: n = max(n, 3)
                elif (w & (c.rd | c.wr)): n = max(n, 3)
        s = sg(p.wr)
        if s:
            if c.valu and (s & c.rd): n = max(n, 4 if c.rdlane else 2)
            if c.vmem and (s & c.rd): n = max(n, 5)
            if c.salu and (s & c.rd): n = max(n, 1)
    if p.mfma and p.passes == 16:
        if c.mfma:
            if p.wr & (c.A | c.B): n = max(n, 18)
            if p.wr & (c.C | c.wr) and not (c.C == p.wr and c.passes == p.passes): n = max(n, 16)
        elif (c.valu or c.vmem or c.ds) and (p.wr & (c.rd | c.wr)): n = max(n, 18)
    elif p.mfma:
        big = p.passes == 8
        if c.mfma:
            if p.wr & (c.A | c.B): n = max(n, 12 if big else 8)
            if p.wr & c.C and not (c.C == p.wr and c.passes == p.passes): n = max(n, 10 if big else 6)
            if p.wr & c.wr and not (p.wr & c.C): n = max(n, 10 if big else 6)
        elif (c.valu or c.vmem or c.ds) and (p.wr & (c.rd | c.wr)): n = max(n, 12 if big else 8)
        if c.valu and (vg(p.C) & c.wr): n = max(n, 7 if big else 3)
    if p.salu and ("x", "m0") in p.wr and (c.lds_dma or "addtid" in c.op): n = max(n, 1)
    if p.vmem and getattr(p, "wide", False) and (p.sdata & c.wr): n = max(n, 2)
    if p.ds and p.op.startswith("ds_write") and False: pass
    return n

def fix(lines, verbose=False):
    ins = [Ins(l) for l in lines]
    total = 0
    start = 0
    while True:
        lab = {x.label: i for i, x in enumerate(ins) if x.label}
        preds = [[] for _ in ins]
        for i, x in enumerate(ins):
            if i + 1 < len(ins) and x.op not in ("s_branch", "s_endpgm"): preds[i + 1].append(i)
            if x.branch and x.ops[0] in lab: preds[lab[x.ops[0]]].append(i)
        changed = False
        for i, c in enumerate(ins):
            if i < start: continue
            if not c.op or c.directive or c.op == "s_nop": continue
            worst = 0
            stack = [(j, 0) for j in preds[i]]
            seen = {}
            while stack:
                j, d = stack.pop()
                if d >= 19 or seen.get(j, 99) <= d: continue
                seen[j] = d
                p = ins[j]
                if p.op and not p.directive:
                    k = need(p, c) - d
                    if k > worst: worst = k; why = p
                for q in preds[j]: stack.append((q, d + p.states))
            if worst > 0:
                if verbose: print(f"nop {worst}: {why.text.strip()}  ->  {c.text.strip()}")
                worst = min(worst, 16)
                ins.insert(i, Ins(f"    s_nop {worst-1}"))
                total += worst
                changed = True
                start = i
                break
        if not changed: break
    return [x.text for x in ins], total
```

```python
import sys, math, struct
sys.path.insert(0, 'tools')
from asmlib import *
import hazard

EPOCH = 0
FLAG_W = 0x1000
STATS = 0x4000
FLAG_H = 0x10000
DUMMY = 0x40000
UG = 0x100000
W2F = 0x400000
HG = 0x600000
SG = 0xC00000
PROF = 0x1400000
WS_BYTES = 0x10000000
L_PROG = 0
L_DF = 64
L_TAG = 0x1C0
L_URDY = 0x1C4
L_SRDY = 0x1C8
L_SDONE = 0x1D0
L_KDONE = 0x1E0
L_KDEAD = 0x1F0
L_KI = 0x180
L_ONE = 512
L_KT = 1296
KT_STRIDE = 17248
L_X = 53248
L_W = L_X + 49152
L_PART = L_W
L_SSM = 512
SSM_STRIDE = 13344
L_KOFF = 8704
L_KB = L_W + 2112
KB_STRIDE = 4640
L_PW = L_W + 16384
RING = 40960
SK = 87
S_X, S_WS, S_W1, S_W2, S_OUT = 40, 44, 48, 52, 56
sXCD, sLOC, sT1, sC1, sT2, sC2, sWAVE, sTAG, sNCH, sP0 = 60, 61, 62, 63, 64, 65, 66, 67, 68, 69
P = dict(u=4, Are=6, Aim=8, Bre=10, Bim=12, Cre=14, Cim=16, logdt=18, Dskip=20, Bx=22, w1=24, b1=26, w2=28, b2=30, out=32, dbg=34, ws=36)

def f2u(x): return struct.unpack("<I", struct.pack("<f", x))[0]
def hx(x): return "0x%08x" % (x & 0xffffffff)
def srd(n): return f"s[{n}:{n+3}]"
def sp(n): return f"s[{n}:{n+1}]"
def v(n, k=1): return f"v{n}" if k == 1 else f"v[{n}:{n+k-1}]"

class Q:
    def __init__(self, a, name, cap):
        self.a, self.name, self.cap, self.q = a, name, cap, []
    def add(self, tag): self.q.append(tag)
    def wait(self, tag):
        if tag not in self.q: return
        pos = len(self.q) - 1 - self.q[::-1].index(tag)
        n = len(self.q) - 1 - pos
        if n > self.cap:
            n = self.cap
        self.a(f"s_waitcnt {self.name}({n})")
        self.q = self.q[len(self.q) - n:] if n else []
    def clear(self): self.q = []

class Gen:
    def __init__(self, opt):
        for k, d in (("kpb", 0), ("dyn", 4), ("r0", 3)): opt.setdefault(k, d)
        self.o = opt
        self.a = Asm()
        self.nprof = 0
        self.ool = []

    def stamp(self, idx, it=False):
        if self.o.get("padst") == idx and getattr(self, "role", "") == "mlp": self.a("s_memrealtime s[92:93]")
        if not self.o.get("prof"): return
        if self.o.get("itp") and getattr(self, "role", "") == "mlp":
            if it != self.o["itp"]: return
        elif it: return
        a = self.a
        r = self.sreg(idx)
        a(f"s_{'memtime' if self.o['prof'] == 2 else 'memrealtime'} s[{r}:{r+1}]")

    def sreg(self, idx): return 88 + 2 * idx if idx < 7 else [20, 22, 24, 36, 28, 26, 34][idx - 7]

    def prof_out(self, n):
        if not self.o.get("prof"): return
        a = self.a
        a("s_waitcnt lgkmcnt(0)")
        if self.o.get("dbgst"):
            role = getattr(self, "role", "")
            wv, base, idxs = {"mlp": (5, 0, self.o.get("dl", [1, 2, 3, 4, 5, 6, 8, 13])), "helper": (0, 8, [1, 2, 4, 5]), "ssm": (1, 12, [1, 6, 2, 3])}[role]
            a(f"s_cmp_lg_u32 s2, {self.o['dbgst']}\ns_cbranch_scc1 .Lend\ns_cmp_lg_u32 s{sWAVE}, {wv}\ns_cbranch_scc1 .Lend")
            a("v_mov_b32 v2, 0")
            for k, i in enumerate(idxs):
                a(f"s_sub_u32 s70, s{self.sreg(i)}, s88\nv_mov_b32 v1, s70\nglobal_store_dword v2, v1, {sp(P['dbg'])} offset:{4*(base+k)}")
            return
        a(f"s_lshl_b32 s70, s2, 3\ns_add_u32 s70, s70, s{sWAVE}\ns_lshl_b32 s70, s70, 6\ns_add_u32 s70, s70, {PROF}")
        for i in range(n):
            a(f"v_mov_b32 v1, s{self.sreg(i)}")
            a(f"buffer_store_dword v1, off, {srd(S_WS)}, s70 offset:{4*i}")

    def lds_wait(self, addr, vt, va, cmp="lg", val="0", name="w", sleep=2):
        a = self.a
        L = a.label(name); E = a.label(name + "e")
        a(f"v_mov_b32 v{va}, {addr}")
        a("s_mov_b32 s71, 0x200000")
        a(f"{L}:")
        a(f"ds_read_b32 v{vt}, v{va}")
        a("s_waitcnt lgkmcnt(0)")
        a(f"v_readfirstlane_b32 s70, v{vt}")
        a(f"s_cmp_{cmp}_u32 s70, {val}")
        a(f"s_cbranch_scc1 {E}")
        a(f"s_sleep {sleep}")
        a("s_sub_u32 s71, s71, 1")
        a(f"s_cbranch_scc0 {L}")
        a(f"{E}:")

    def kdone_wait(self, vt, va, addr=None, sc=87):
        a = self.a
        L = a.label("kd"); E = a.label("kde")
        a(f"v_and_b32 v{va}, 3, v0")
        a(f"v_cmp_gt_u32 vcc, s{sNCH}, v{va}")
        a(f"v_lshlrev_b32 v{va}, 2, v{va}")
        a("s_mov_b64 s[70:71], vcc")
        a(f"s_mov_b32 s{sc}, 0x200000")
        a(f"{L}:")
        a(f"ds_read_b32 v{vt}, v{va} offset:{addr or L_KDONE}")
        a("s_waitcnt lgkmcnt(0)")
        a(f"v_cmp_eq_u32 vcc, 0, v{vt}")
        a("s_and_b64 vcc, vcc, s[70:71]")
        a(f"s_cbranch_scc0 {E}")
        a("s_sleep 1")
        a(f"s_sub_u32 s{sc}, s{sc}, 1")
        a(f"s_cbranch_scc0 {L}")
        a(f"{E}:")

    def get_tag(self, vt, va):
        self.lds_wait(L_TAG, vt, va, name="tag")
        self.a(f"s_mov_b32 s{sTAG}, s70")

    def srds(self, names):
        a = self.a
        for r, k, sz in ((S_X, "u", 2621440), (S_WS, "ws", WS_BYTES), (S_W1, "w1", 1966080), (S_W2, "w2", 1966080), (S_OUT, "out", 2621440)):
            if k in names and k == "ws" and self.o.get("wsoff"):
                off = self.o["wsoff"] << 20
                a(f"s_add_u32 s{r}, s{P[k]}, {off}\ns_addc_u32 s{r+1}, s{P[k]+1}, 0\ns_mov_b32 s{r+2}, {sz-off}\ns_mov_b32 s{r+3}, 0x20000")
            elif k in names:
                a(f"s_mov_b64 {sp(r)}, {sp(P[k])}\ns_mov_b32 s{r+2}, {sz}\ns_mov_b32 s{r+3}, 0x20000")

    def ids2(self):
        a = self.a
        a(f"s_lshr_b32 s70, s{sXCD}, 1\ns_lshl_b32 s70, s70, 3\ns_and_b32 s71, s{sLOC}, 7\ns_add_u32 s{sT2}, s70, s71")
        a(f"s_and_b32 s70, s{sXCD}, 1\ns_lshl_b32 s70, s70, 2\ns_lshr_b32 s71, s{sLOC}, 3\ns_add_u32 s{sC2}, s70, s71")

    def ids_ssm(self):
        a = self.a
        a(f"s_mul_i32 s72, s{sLOC}, 86\ns_lshr_b32 s72, s72, 8")
        a(f"s_mul_i32 s73, s72, 3\ns_sub_u32 s73, s{sLOC}, s73")
        a(f"s_mul_i32 s{sP0}, s{sXCD}, 80\ns_sub_u32 s{sP0}, s{sP0}, s72")
        a(f"s_mul_i32 s72, s{sLOC}, 3\ns_add_u32 s{sP0}, s{sP0}, s72")
        a(f"s_cmp_eq_u32 s73, 2\ns_cselect_b32 s{sNCH}, 2, 3")
        a(f"s_cmp_ge_u32 s{sLOC}, 30\ns_cselect_b32 s{sNCH}, 0, s{sNCH}")

    def prologue(self):
        a = self.a
        a("s_load_dwordx16 s[4:19], s[0:1], 0")
        a("s_load_dwordx16 s[20:35], s[0:1], 64")
        a("s_load_dwordx2 s[36:37], s[0:1], 128")
        a("s_cmp_ge_u32 s2, 256")
        a("s_cbranch_scc1 .Lend0")
        self.stamp(0)
        if self.o.get("dbgclk"): a("s_memtime s[98:99]\ns_memrealtime s[100:101]")
        a("s_getpc_b64 s[38:39]")
        a("v_lshrrev_b32 v1, 6, v0")
        a(f"s_lshr_b32 s{sLOC}, s2, 3")
        a(f"v_readfirstlane_b32 s{sWAVE}, v1")
        if self.o.get("cpf", 1):
            a(f"v_lshrrev_b32 v1, 5, v0\nv_lshl_add_u32 v1, s{sLOC}, 4, v1\nv_lshlrev_b32 v1, 7, v1")
            a("v_min_u32 v1, CODE_LAST, v1")
            a("global_load_dword v255, v1, s[38:39]")
        a("v_lshlrev_b32 v1, 2, v0")
        a("v_mov_b32 v2, 0")
        a("ds_write_b32 v1, v2")
        a("v_and_b32 v0, 63, v0")
        a(f"s_and_b32 s{sXCD}, s2, 7")
        a(f"s_and_b32 s72, s2, 6\ns_lshl_b32 s72, s72, 1\ns_and_b32 s73, s{sLOC}, 3\ns_add_u32 s{sT1}, s72, s73")
        a(f"s_and_b32 s72, s2, 1\ns_lshl_b32 s72, s72, 3\ns_lshr_b32 s73, s{sLOC}, 2\ns_add_u32 s{sC1}, s72, s73")
        a(f"s_cmp_ge_u32 s{sWAVE}, 4")
        a("s_cbranch_scc1 .Lmlp0")
        a(f"s_cmp_lg_u32 s{sWAVE}, 0")
        a("s_cbranch_scc1 .Lssm0")
        XA, XB = 8, 40
        a(f"s_setprio {self.o.get('hprio', 3)}")
        a("v_lshlrev_b32 v1, 4, v0")
        a("v_lshlrev_b32 v2, 2, v0")
        a(f"s_lshl_b32 s70, s{sT1}, 7\ns_add_u32 s70, s70, s{sC1}\ns_mul_i32 s70, s70, 1280")
        a("s_movk_i32 s71, 20480")
        a("s_waitcnt lgkmcnt(0)")
        self.srds(["u", "ws"])
        a(f"buffer_load_dword v3, off, {srd(S_WS)}, 0 sc1")
        if self.o.get("lngate", -1) >= 0:
            a("s_barrier")
            a("s_mov_b32 s72, s70")
            if self.o["lngate"] >= 10:
                a(f"s_add_u32 s73, s{sT1}, s{sC1}\ns_and_b32 s73, s73, 3\ns_min_u32 s73, s73, {self.o['lngate'] - 10}\ns_min_u32 s74, s73, 1\ns_lshl_b32 s73, s73, 2\ns_add_u32 s73, s73, {L_DF - 4}")
                self.lds_wait("s73", 4, 5, cmp="ge", val="s74", name="lg", sleep=2)
            else: self.lds_wait(L_DF + 4 * self.o["lngate"], 4, 5, name="lg", sleep=2)
            a("s_mov_b32 s70, s72\ns_movk_i32 s71, 20480")
        for i in range(0 if self.o.get("noside") else 8):
            a(f"buffer_load_dwordx4 {v(XA+4*i,4)}, v1, {srd(S_X)}, s70 offen")
            a(f"buffer_load_dword v{XB+i}, v2, {srd(S_X)}, s70 offen offset:1024")
            if i < 7: a("s_add_u32 s70, s70, s71")
        if self.o.get("tlb", 0):
            sh = self.o.get("tlbsh", 20)
            a(f"v_and_b32 v4, 15, v0\nv_lshlrev_b32 v4, {sh}, v4")
            a(f"buffer_load_dword v5, v4, {srd(S_WS)}, 0 offen offset:256")
            a(f"v_and_b32 v4, 1, v0\nv_lshlrev_b32 v4, 21, v4")
            a(f"global_load_dword v6, v4, {sp(P['out'])}")
            a(f"global_load_dword v7, v2, {sp(P['b2'])}")
        if self.o.get("lngate", -1) < 0: a("s_barrier")
        a("s_branch .Lhelper")
        a(".Lend0:")
        a("s_endpgm")
        a(".Lssm0:")
        self.ids_ssm()
        a(f"s_sub_u32 s72, s{sWAVE}, 1")
        a(f"s_add_u32 s73, s{sP0}, s72")
        a("s_and_b32 s74, s73, 63\ns_lshr_b32 s75, s73, 6")
        a("s_lshl_b32 s76, s74, 3\ns_lshl_b32 s77, s74, 1\ns_addk_i32 s77, 504")
        a("s_cmp_ge_u32 s75, 8\ns_cselect_b32 s76, s77, s76\ns_add_u32 s76, s76, s75")
        a("s_min_u32 s76, s76, 639")
        a("s_mul_i32 s70, s76, 384\nv_lshl_add_u32 v1, v0, 2, s70\nv_lshl_add_u32 v2, v0, 1, s70")
        a("s_lshl_b32 s70, s76, 1\ns_and_b32 s70, s70, 0xffc")
        a("s_waitcnt lgkmcnt(0)")
        names = ["Are", "Aim", "Bre", "Bim", "Cre", "Cim"]
        for k in range(0 if self.o.get("noside") else 6):
            a(f"global_load_dword v{8+k}, v1, {sp(P[names[k]])}{' nt' if self.o.get('nt', 0) else ''}")
            a(f"global_load_ushort v{20+k}, v2, {sp(P[names[k]])} offset:256{' nt' if self.o.get('nt', 0) else ''}")
        a(f"s_load_dword s84, {sp(P['logdt'])}, s70")
        a(f"s_load_dword s85, {sp(P['Dskip'])}, s70")
        a("s_barrier")
        a("s_branch .Lssm")
        self.mlp()

    def helper(self):
        a = self.a
        o = self.o
        XA, XB = 8, 40
        RW = 48
        ST = 80
        T = 96
        G = 112
        vm = Q(a, "vmcnt", 63)
        a(".Lhelper:")
        self.role = "helper"
        if o.get("cpf", 1): vm.add("c")
        vm.add("e")
        for i in range(16): vm.add("x")
        if o.get("tlb", 0): vm.add("t"); vm.add("t"); vm.add("t")
        if o.get("nohelp"): a("s_endpgm")
        self.ids2()
        self.ids_ssm()
        vm.wait("e")
        a("v_readfirstlane_b32 s70, v3")
        a("s_mul_i32 s70, s70, 0x9E3779B1")
        a("s_add_u32 s86, s70, 0x7F4A7C15")
        a("s_andn2_b32 s70, 1, s86\ns_lshl_b32 s70, s70, 2\ns_andn2_b32 s71, s86, 4")
        a(f"s_or_b32 s{sTAG}, s70, s71")
        a(f"v_mov_b32 v3, s{sTAG}\nv_mov_b32 v{T+2}, {L_TAG}")
        a(f"ds_write_b32 v{T+2}, v3")
        vm.wait("x")
        self.stamp(1)
        XF = 136
        a("s_mov_b32 s79, 0xffff0000")
        for d in range(5):
            for i in range(8):
                x = XA + 4 * i + d if d < 4 else XB + i
                f = XF + 10 * i + 2 * d
                a(f"v_lshlrev_b32 v{f}, 16, v{x}\nv_and_b32 v{f+1}, s79, v{x}")
                if d == 0:
                    a(f"v_add_f32 v{ST+i}, v{f}, v{f+1}\nv_mul_f32 v{ST+8+i}, v{f}, v{f}")
                else:
                    a(f"v_add_f32 v{ST+i}, v{ST+i}, v{f}\nv_fmac_f32 v{ST+8+i}, v{f}, v{f}\nv_add_f32 v{ST+i}, v{ST+i}, v{f+1}")
                a(f"v_fmac_f32 v{ST+8+i}, v{f+1}, v{f+1}")
        for b in range(0, 16, 4):
            a(f"v_permlane32_swap_b32 v{ST+b}, v{ST+b+2}")
            a(f"v_permlane32_swap_b32 v{ST+b+1}, v{ST+b+3}")
        for b in range(0, 16, 4):
            a(f"v_add_f32 v{ST+b}, v{ST+b}, v{ST+b+2}")
            a(f"v_add_f32 v{ST+b+1}, v{ST+b+1}, v{ST+b+3}")
        for b in range(0, 16, 4):
            a(f"v_permlane16_swap_b32 v{ST+b}, v{ST+b+1}")
        for b in range(0, 16, 4):
            a(f"v_add_f32 v{ST+b}, v{ST+b}, v{ST+b+1}")
        for sh in (8, 4, 2, 1):
            for b in range(0, 16, 4):
                a(f"v_add_f32_dpp v{ST+b}, v{ST+b}, v{ST+b} row_ror:{sh} row_mask:0xf bank_mask:0xf")
        a(f"s_mov_b32 s70, {hx(f2u(1/640))}\ns_mov_b32 s71, {hx(f2u(1e-5))}")
        seq = [[], []]
        for k in range(2):
            S, Qr = ST + 4 * k, ST + 8 + 4 * k
            t = T + 8 * k
            seq[k] = [f"v_mul_f32 v{S}, s70, v{S}", f"v_mul_f32 v{Qr}, s70, v{Qr}", f"v_fma_f32 v{Qr}, -v{S}, v{S}, v{Qr}",
                      f"v_max_f32 v{Qr}, 0, v{Qr}", f"v_add_f32 v{t+4}, s71, v{Qr}", f"v_rsq_f32 v{t+4}, v{t+4}",
                      f"v_mul_f32 v{Qr}, v{Qr}, v{t+4}", f"v_fma_f32 v{Qr}, v{Qr}, v{t+4}, s71", f"v_rsq_f32 v{Qr}, v{Qr}",
                      f"v_mul_f32 v{t+5}, -v{S}, v{t+4}", f"v_mul_f32 v{t}, v{Qr}, v{t+4}", f"v_sub_f32 v{t+1}, 0, v{S}",
                      f"v_rcp_f32 v{t+2}, v{t}", f"v_mov_b32 v{t+3}, s{sTAG}"]
        for x, y in zip(*seq): a(x); a(y)
        a(f"s_lshl_b32 s80, s{sT1}, 4\ns_add_u32 s80, s80, s{sC1}")
        a(f"s_lshl_b32 s70, s80, 7\ns_add_u32 s70, s70, {STATS}")
        a("s_mov_b32 exec_lo, 0x00010001\ns_mov_b32 exec_hi, 0x00010001")
        a(f"buffer_store_dwordx4 {v(T,4)}, v0, {srd(S_WS)}, s70 offen sc1"); vm.add("us")
        a(f"buffer_store_dwordx4 {v(T+8,4)}, v0, {srd(S_WS)}, s70 offen offset:64 sc1"); vm.add("us")
        a("s_mov_b64 exec, -1")
        SR = 4
        for i in range(8):
            t = T + 8 * (i // 4)
            a(f"v_readlane_b32 s{SR+2*i}, v{t+4}, {16*(i%4)}")
            a(f"v_readlane_b32 s{SR+2*i+1}, v{t+5}, {16*(i%4)}")
        a(f"s_mul_i32 s70, s80, 10240\ns_add_u32 s70, s70, {UG}")
        a("s_mov_b32 s71, 0xffff0000")
        TG = 128
        a("s_mov_b32 s81, 0x00030003")
        for k in range(4):
            a(f"s_lshr_b32 s82, s{sTAG}, {2*k}\ns_and_b32 s82, s82, s81\nv_mov_b32 v{TG+k}, s82")
        for i in range(8): a(f"v_mov_b32 v{ST+i}, s{SR+2*i+1}")
        for d in range(5):
            g = G + 8 * (d % 2)
            for hl in range(2):
                for i in range(8):
                    f = XF + 10 * i + 2 * d + hl
                    a(f"v_fma_f32 v{f}, v{f}, s{SR+2*i}, v{ST+i}")
                for q in range(4):
                    a(f"v_cvt_pk_f16_f32 v{g+4*hl+q}, v{XF+20*q+2*d+hl}, v{XF+20*q+10+2*d+hl}")
                for q in range(4):
                    a(f"v_bfi_b32 v{g+4*hl+q}, s81, v{TG+q}, v{g+4*hl+q}")
                if hl == 0 and d in (2, 4): a("s_add_u32 s70, s70, 4096")
                a(f"buffer_store_dwordx4 {v(g+4*hl,4)}, v1, {srd(S_WS)}, s70 offen offset:{((2*d+hl)%4)*1024} sc1"); vm.add("us")
        self.stamp(2)
        if o.get("lnonly"):
            self.prof_out(3); a("s_endpgm"); return
        D, EE = 136, 40
        a(f"s_and_b32 s72, s{sP0}, 7")
        a("v_and_b32 v4, 3, v0\nv_lshrrev_b32 v5, 2, v0")
        a("v_add_u32 v6, s72, v4\nv_lshrrev_b32 v7, 3, v6\nv_lshlrev_b32 v7, 2, v7\nv_sub_u32 v6, v6, v7")
        a("v_lshlrev_b32 v6, 4, v6")
        a("s_movk_i32 s73, 10240")
        a("v_mad_u32_u24 v6, v5, s73, v6")
        a(f"v_mul_u32_u24 v7, {SSM_STRIDE}, v4")
        a("s_movk_i32 s73, 272")
        a("v_mad_u32_u24 v7, v5, s73, v7")
        a(f"s_andn2_b32 s83, s{sP0}, 7\ns_lshl_b32 s83, s83, 4\ns_add_u32 s83, s83, {UG}")
        a(f"s_and_b32 s84, s{sXCD}, 1\ns_lshl_b32 s84, s84, 5\ns_add_u32 s84, s84, s{sLOC}\ns_mul_i32 s84, s84, 30720\ns_add_u32 s84, s84, {W2F}")
        self.stamp(3)
        a("s_setprio 0")
        if o.get("lsl", 0): self.lds_wait(L_DF + 4 * 6, 8, 9, name="g6", sleep=8)
        self.lds_wait(L_DF + 4 * o.get("ggate", 8), 8, 9, name="gg", sleep=1)
        a(f"s_setprio {o.get('hprio', 3)}")
        skip = a.label("nou")
        a(f"s_cmp_eq_u32 s{sNCH}, 0")
        a(f"s_cbranch_scc1 {skip}")
        L = a.label("pu"); E = a.label("pue")
        a("s_mov_b32 s71, 0x20000")
        a(f"{L}:")
        a("s_mov_b32 s70, s83")
        for b in range(16):
            a(f"buffer_load_dwordx4 {v(D+4*b,4)}, v6, {srd(S_WS)}, s70 offen sc1")
            if b < 15: a(f"s_add_u32 s70, s70, {16*10240}")
        NPF = o.get("npf", 0)
        pf = a.label("pf")
        a(f"s_cmp_lg_u32 s71, 0x20000\ns_cbranch_scc1 {pf}")
        for k in range(NPF):
            a(f"buffer_load_dwordx4 {v(200+4*(k%8),4)}, v1, {srd(S_WS)}, s84 offen offset:{(k%4)*1024} sc1")
            if k % 4 == 3: a("s_add_u32 s84, s84, 4096")
        a(f"s_waitcnt vmcnt({NPF})")
        a(f"s_branch {pf}x")
        a(f"{pf}:")
        a("s_waitcnt vmcnt(0)")
        a(f"{pf}x:")
        a("v_mov_b32 v8, 0")
        for b in range(16):
            for d in range(4): a(f"v_xor_b32 v{D+4*b+d}, v{TG+d}, v{D+4*b+d}")
            a(f"v_or3_b32 v8, v8, v{D+4*b}, v{D+4*b+1}")
            a(f"v_or3_b32 v8, v8, v{D+4*b+2}, v{D+4*b+3}")
        a("v_and_b32 v8, s81, v8")
        a("v_or_b32_dpp v8, v8, v8 quad_perm:[1,0,3,2] row_mask:0xf bank_mask:0xf")
        a("v_or_b32_dpp v8, v8, v8 quad_perm:[2,3,0,1] row_mask:0xf bank_mask:0xf")
        a("v_cmp_ne_u32 vcc, 0, v8")
        a(f"s_cbranch_vccz {E}")
        a("s_mov_b64 exec, vcc")
        a(f"s_sleep {o.get('usleep', 4)}")
        a("s_sub_u32 s71, s71, 1")
        a(f"s_cbranch_scc0 {L}")
        a(f"{E}:")
        a("s_mov_b64 exec, -1")
        self.stamp(4)
        for i in range(64):
            if i == 0: a(f"v_lshlrev_b32 v{EE}, 16, v{D}")
            else: a(f"v_alignbyte_b32 v{EE+i}, v{D+i}, v{D+i-1}, 2")
        self.lds_wait(L_PROG, 8, 9, cmp="ge", val="11", name="wg", sleep=1)
        self.kdone_wait(8, 9)
        a(f"v_cmp_gt_u32 vcc, s{sNCH}, v4")
        a("s_mov_b64 exec, vcc")
        for b in range(16):
            a(f"ds_write_b128 v7, {v(D+4*b,4)} offset:{L_SSM+16*272+16*b}")
            a(f"ds_write_b128 v7, {v(EE+4*b,4)} offset:{L_SSM+16*b}")
        a("s_mov_b64 exec, -1")
        a("s_cmp_lg_u32 s2, 0")
        a(f"s_cbranch_scc1 {skip}")
        a("s_mov_b64 exec, 1")
        a("v_mov_b32 v4, s86")
        a(f"buffer_store_dword v4, off, {srd(S_WS)}, 0 sc1")
        a("s_mov_b64 exec, -1")
        a(f"{skip}:")
        a(f"v_mov_b32 v4, 1\nv_mov_b32 v5, {L_URDY}")
        a("ds_write_b32 v5, v4")
        self.stamp(5)
        if o.get("only1"):
            self.prof_out(6); a("s_endpgm"); return
        a("s_setprio 0")
        a(f"s_lshl_b32 s83, s{sC2}, 5\ns_add_u32 s83, s83, s{sT2}\ns_mul_i32 s83, s83, 10240\ns_add_u32 s83, s83, {SG}")
        a("s_lshl_b32 s81, s81, 13")
        for k in range(4): a(f"v_lshlrev_b32 v{TG+k}, 13, v{TG+k}")
        if o.get("c4", 0): self.helper_conv(TG)
        a("v_lshrrev_b32 v6, 5, v0\nv_lshl_add_u32 v6, v6, 4, v1")
        self.lds_wait(L_PROG + 16, 4, 5, cmp="ge", val="13", name="g2", sleep=4)
        a(f"s_min_u32 s72, s{sNCH}, 1")
        self.lds_wait(L_SDONE, 4, 5, cmp="ge", val="s72", name="sd", sleep=4)
        a("s_setprio 3")
        L = a.label("ps"); E = a.label("pse")
        a("s_mov_b32 s71, 0x20000")
        a(f"{L}:")
        a("s_mov_b32 s70, s83")
        for k in range(10):
            a(f"buffer_load_dwordx4 {v(8+4*k,4)}, v1, {srd(S_WS)}, s70 offen offset:{(k%4)*1024} sc1")
            if k % 4 == 3: a("s_add_u32 s70, s70, 4096")
        a("v_mov_b32 v4, 0")
        for k in range(10):
            a(f"s_waitcnt vmcnt({9-k})")
            for d in range(4): a(f"v_xor_b32 v{8+4*k+d}, v{TG+d}, v{8+4*k+d}")
            a(f"ds_write_b128 v6, {v(8+4*k,4)} offset:{L_SSM + 1056*k}")
            a(f"v_or3_b32 v4, v4, v{8+4*k}, v{9+4*k}\nv_or3_b32 v4, v4, v{10+4*k}, v{11+4*k}")
        a("v_and_b32 v4, s81, v4")
        a("v_or_b32_dpp v4, v4, v4 quad_perm:[1,0,3,2] row_mask:0xf bank_mask:0xf")
        a("v_or_b32_dpp v4, v4, v4 quad_perm:[2,3,0,1] row_mask:0xf bank_mask:0xf")
        a("v_or_b32_dpp v4, v4, v4 row_half_mirror row_mask:0xf bank_mask:0xf")
        a("v_cmp_ne_u32 vcc, 0, v4")
        a(f"s_cbranch_vccz {E}")
        a("s_mov_b64 exec, vcc")
        a(f"s_sleep {o.get('ssleep', 4)}")
        a("s_sub_u32 s71, s71, 1")
        a(f"s_cbranch_scc0 {L}")
        a(f"{E}:")
        a("s_mov_b64 exec, -1")
        a(f"v_mov_b32 v4, 1\nv_mov_b32 v5, {L_SRDY}")
        a("ds_write_b32 v5, v4")
        self.stamp(6)
        self.prof_out(7)
        a("s_endpgm")

    def helper_conv(self, TG):
        a = self.a
        done = a.label("hc")
        a(f"s_cmp_eq_u32 s{sNCH}, 0\ns_cbranch_scc1 {done}")
        vK, vU, vS = 8, 11, 12
        KB, UB, NU, Y, SO = [16, 48, 80], 136, 10, 176, 200
        a("v_and_b32 v4, 15, v0\nv_lshrrev_b32 v5, 4, v0\nv_sub_u32 v6, 15, v4\nv_and_b32 v7, 1, v6")
        a("v_lshrrev_b32 v6, 1, v6\nv_lshlrev_b32 v6, 2, v6\nv_mul_u32_u24 v13, 288, v5\nv_add_u32 v6, v6, v13\nv_cmp_eq_u32 vcc, 1, v7")
        for w in range(3):
            a(f"v_mov_b32 v13, {L_SSM + w*SSM_STRIDE + L_KOFF}\nv_mov_b32 v14, {L_KB + w*KB_STRIDE}\nv_cndmask_b32 v13, v13, v14, vcc\nv_add_u32 v{vK+w}, v13, v6")
        a(f"v_sub_u32 v6, v4, v5\nv_add_u32 v6, 4, v6\nv_mul_u32_u24 v{vU}, 272, v6")
        a(f"v_and_b32 v6, 7, v0\nv_lshrrev_b32 v5, 3, v0\nv_add_u32 v5, 8, v5\nv_mul_u32_u24 v5, 10240, v5\nv_lshl_add_u32 v{vS}, v6, 4, v5")
        L = a.label("ki"); E = a.label("kie")
        a(f"v_and_b32 v4, 3, v0\nv_cmp_gt_u32 vcc, s{sNCH}, v4\nv_lshlrev_b32 v4, 4, v4\ns_mov_b64 s[72:73], vcc\ns_mov_b32 s71, 0x200000")
        a(f"{L}:\nds_read_b96 v[16:18], v4 offset:{L_KI}\ns_waitcnt lgkmcnt(0)\nv_cmp_eq_u32 vcc, 0, v18\ns_and_b64 vcc, vcc, s[72:73]")
        a(f"s_cbranch_scc0 {E}\ns_sleep 1\ns_sub_u32 s71, s71, 1\ns_cbranch_scc0 {L}\n{E}:")
        for w in range(3): a(f"v_readlane_b32 s{4+w}, v16, {w}\nv_readlane_b32 s{8+w}, v17, {w}")
        lg = Q(a, "lgkmcnt", 15)
        units = [(w, G) for w in range(3) for G in range(4)]
        mf = [(n, beta, tau) for n in range(12) for beta in range(8) for tau in (2, 3) if beta <= 2 * tau + 1]
        first = {}; last = {}
        for i, (n, beta, tau) in enumerate(mf):
            first.setdefault(n * 8 + beta, i); last[n * 8 + beta] = i
        kq = []
        for n, (w, G) in enumerate(units):
            for d in range(0, 32, 2):
                l = f"ds_read2_b32 {v(KB[n%3]+d,2)}, v{vK+w} offset0:{32+d} offset1:{33+d}"
                if d == 30 and G < 3: l += f"\nv_add_u32 v{vK+w}, 1152, v{vK+w}"
                kq.append((n, l))
        nu = [0]
        def uread():
            u = nu[0]; n, beta = divmod(u, 8); w, G = units[n]
            a(f"ds_read_b128 {v(UB+4*(u%NU),4)}, v{vU} offset:{L_SSM+w*SSM_STRIDE+(3-G)*1088+16*beta}"); lg.add(("u", u)); nu[0] += 1
        def kread():
            n, l = kq.pop(0); a(l); lg.add(("k", n))
        for _ in range(32): kread()
        for _ in range(8): uread()
        self.lds_wait(L_PROG, 4, 5, cmp="ge", val="12", name="hg", sleep=1); lg.clear()
        a(f"s_setprio {self.o.get('cprio', 0)}")
        epi = []
        for i, (n, beta, tau) in enumerate(mf):
            w, G = units[n]
            if (G, beta, tau) == (0, 0, 2) and w == 2:
                for _, ls in epi:
                    for l in ls: a(l)
                epi = []
                a(f"s_cmp_eq_u32 s{sNCH}, 2\ns_cbranch_scc1 {done}")
            u = n * 8 + beta
            assert (not kq or kq[0][0] > n) and nu[0] > u
            lg.wait(("u", u)); lg.wait(("k", n))
            y = Y + 8 * w + 4 * (tau - 2)
            f = 2 * tau - beta + 1
            a(f"v_mfma_f32_16x16x32_f16 {v(y,4)}, {v(KB[n%3]+(7-f)*4,4)}, {v(UB+4*(u%NU),4)}, {'0' if (G == 0 and beta == 0) else v(y,4)}")
            slots = 2
            if nu[0] < 96 and last.get(nu[0] - NU, -1) <= i and first[nu[0]] - i <= 14: uread(); slots -= 1
            if epi and epi[0][0] <= i:
                a(epi[0][1].pop(0)); slots -= 1
                if not epi[0][1]: epi.pop(0)
            while kq and kq[0][0] <= n + 2 and (slots > 0 or kq[0][0] <= n + 1 and slots > -1):
                kread(); slots -= 1
            if G == 3 and beta == 2 * tau + 1:
                e = tau - 2; so = SO + 4 * w
                ops = [f"v_mul_f32 v{y+k}, s{4+w}, v{y+k}" for k in range(4)]
                ops += [f"v_cvt_pk_bf16_f32 v{so+2*e+k}, v{y+2*k}, v{y+2*k+1}" for k in range(2)]
                ops += [f"v_bfi_b32 v{so+2*e+k}, s81, v{TG+2*e+k}, v{so+2*e+k}" for k in range(2)]
                if e: ops.append(f"buffer_store_dwordx4 {v(so,4)}, v{vS}, {srd(S_WS)}, s{8+w} offen sc1")
                epi.append((i + 4, ops))
        assert not kq
        for _, ls in epi:
            for l in ls: a(l)
        a(f"{done}:")
        a(f"v_mov_b32 v4, 1\nv_mov_b32 v5, {L_SDONE-4}\nds_write_b32 v5, v4")
        a("s_setprio 0")

    def cmul(self, d, x, y, t):
        return [f"v_pk_mul_f32 {v(t,2)}, {v(x,2)}, {v(y,2)} op_sel_hi:[0,1]",
                f"v_pk_fma_f32 {v(d,2)}, {v(x,2)}, {v(y,2)}, {v(t,2)} op_sel:[1,1,0] op_sel_hi:[1,0,1] neg_lo:[0,1,0]"]

    def cmul4(self, d, x, y):
        return [f"v_mul_f32 v{d}, v{x}, v{y}", f"v_mul_f32 v{d+1}, v{x}, v{y+1}",
                f"v_fma_f32 v{d}, -v{x+1}, v{y+1}, v{d}", f"v_fmac_f32 v{d+1}, v{x+1}, v{y}"]

    def ssm(self):
        a = self.a
        a(".Lssm:")
        self.role = "ssm"
        PR = 8
        a(f"s_cmp_ge_u32 s72, s{sNCH}")
        a("s_cbranch_scc1 .Lend")
        if self.o.get("nossm"): a("s_endpgm")
        self.srds(["ws"])
        a(f"s_setprio {self.o.get('kprio', 1)}")
        a(f"s_mul_i32 s78, s72, {SSM_STRIDE}\ns_add_u32 s78, s78, {L_SSM}")
        vKA1, vKL1, vKA2, vKL2, vKA0 = 4, 5, 6, 7, 1
        a(f"s_add_u32 s79, s78, {L_KOFF}")
        cols1 = [(1, r) for r in range(0, 17, 2)] + [(2, r) for r in range(0, 17, 4)] + [(3, 0), (3, 4)]
        cols2 = [(3, 8), (3, 12), (3, 16)] + [(c, r) for c in range(4, 8) for r in (0, 8, 16)]
        cols2.append(cols2[-1])
        def rows_for(c, rp):
            h = 2 if c == 1 else 4 if c < 4 else 8
            out = []
            for rho in range(16):
                q, rem = divmod(rho, h)
                if rem * 2 > h or (rem * 2 == h and q % 2 == 1): q += 1
                if q * h == rp: out.append(rho)
            return out
        a("v_and_b32 v30, 15, v0\nv_lshlrev_b32 v31, 2, v30\nv_lshrrev_b32 v32, 4, v0")
        a(f"v_lshlrev_b32 v32, 3, v32\nv_sub_u32 v32, 248, v32\nv_add_u32 v32, s79, v32")
        a(f"s_movk_i32 s70, 288\nv_mad_u32_u24 v{vKA0}, v30, s70, v32")
        reps = []
        for cols, va, vl in ((cols1, vKA1, vKL1), (cols2, vKA2, vKL2)):
            tabs = [0, 0, 0]
            mx = 0
            for q, (c, rp) in enumerate(cols):
                rr = rows_for(c, rp); mx = max(mx, len(rr))
                tabs[0] |= rr[0] << (4 * q); tabs[1] |= rr[-1] << (4 * q); tabs[2] |= c << (4 * q)
            reps.append(mx)
            for k in range(3):
                a(f"s_mov_b32 s80, {hx(tabs[k])}\ns_mov_b32 s81, {hx(tabs[k] >> 32)}")
                a(f"v_lshrrev_b64 v[34:35], v31, s[80:81]")
                a(f"v_and_b32 v{36+k}, 15, v34")
            a("v_lshlrev_b32 v38, 5, v38\nv_sub_u32 v38, v32, v38")
            a(f"v_mad_u32_u24 v{va}, v36, s70, v38")
            a(f"v_mad_u32_u24 v{vl}, v37, s70, v38")
        rowname = ["one", "a0", "a1", "a2", "a3", "z64", "z128", "z192", "z1", "z2", "z3", "z4", "z8", "z12", "z16",
                   "g1", "g2", "g3", "g4", "g5", "g6", "g7", "g1p"]
        ridx = {n: i for i, n in enumerate(rowname)}
        zn = lambda e: "one" if e == 0 else f"z{e}"
        fac = [[(f"a{m%4}", zn(64 * (m // 4))) for m in range(16)],
               [(zn(m % 4), zn(4 * (m // 4))) for m in range(16)]]
        for cols in (cols1, cols2):
            fac.append([("g1p", zn(rp - 2)) if rp % 4 == 2 else (f"g{c}", zn(rp)) for c, rp in cols])
        FADR = 240
        a(f"s_mul_i32 s86, s72, {KT_STRIDE}\ns_add_u32 s86, s86, {L_KT - 784}")
        a(f"v_and_b32 v36, 16, v0\nv_and_b32 v33, 32, v0\nv_lshlrev_b32 v33, 1, v33\nv_lshl_add_u32 v36, v36, 3, v33\nv_add_u32 v33, s86, v36\nv_add_u32 v36, {L_ONE}, v36")
        a("s_movk_i32 s70, 784")
        for t in range(4):
            for h in range(2):
                idx = [ridx[fac[t][m][h]] for m in range(16)]
                base = min(idx) if max(idx) > 15 else 0
                assert max(idx) - base < 16
                tab = sum((x - base) << (4 * m) for m, x in enumerate(idx))
                a(f"s_mov_b32 s80, {hx(tab)}\ns_mov_b32 s81, {hx(tab >> 32)}")
                a(f"v_lshrrev_b64 v[34:35], v31, s[80:81]")
                a(f"v_and_b32 v34, 15, v34")
                if base: a(f"v_add_u32 v34, {base}, v34")
                if 0 in idx: a("v_cmp_eq_u32 vcc, 0, v34")
                a(f"v_mad_u32_u24 v{FADR+2*t+h}, v34, s70, v33")
                if 0 in idx: a(f"v_cndmask_b32 v{FADR+2*t+h}, v{FADR+2*t+h}, v36, vcc")
        a("s_mov_b32 m0, 0")
        a("v_mov_b32 v34, 0x3c00")
        for j in range(3): a(f"ds_write_addtid_b32 v34 offset:{L_ONE+256*j}")
        a("s_mov_b32 m0, s86")
        a("s_waitcnt vmcnt(0) lgkmcnt(0)")
        self.stamp(1)
        a("s_bitcmp1_b32 s76, 0")
        a("s_cselect_b32 s70, 0, 16")
        a("s_lshl_b32 s84, s84, s70\ns_lshl_b32 s85, s85, s70\ns_mov_b32 s71, 0xffff0000\ns_and_b32 s84, s84, s71\ns_and_b32 s85, s85, s71")
        vDT, vDS = PR + 18, PR + 19
        a(f"v_mov_b32 v{vDT}, s84\nv_mov_b32 v{vDS}, s85")
        a(f"v_mul_f32 v{vDT}, {hx(f2u(math.log2(math.e)))}, v{vDT}")
        a(f"v_exp_f32 v{vDT}, v{vDT}")
        for k in range(6):
            a(f"v_and_b32 v{PR+6+k}, s71, v{PR+k}\nv_lshlrev_b32 v{PR+k}, 16, v{PR+k}\nv_lshlrev_b32 v{PR+12+k}, 16, v{PR+12+k}")
        a(f"v_cvt_pk_bf16_f32 v{vDT}, v{vDT}, v{vDT}")
        a(f"v_and_b32 v{vDT}, s71, v{vDT}")
        for j in range(3):
            b = PR + 6 * j
            for l in self.cmul4(40 + 2 * j, b + 4, b + 2): a(l)
        a(f"v_mul_f32 v30, {hx(f2u(math.log2(math.e)))}, v{vDT}")
        a(f"v_mul_f32 v31, {hx(f2u(1/(2*math.pi)))}, v{vDT}")
        for j in range(3):
            b = PR + 6 * j
            a(f"v_mul_f32 v{b}, v{b}, v30\nv_mul_f32 v{b+1}, v{b+1}, v31")
            a(f"v_add_f32 v{32+j}, abs(v{40+2*j}), abs(v{41+2*j})")
        a(f"v_rcp_f32 v35, v{vDT}")
        a("v_max3_f32 v32, v32, v33, v34")
        a(f"v_mul_f32 v{vDS}, v{vDS}, v35")
        a(f"v_mul_f32 v33, {hx(f2u(1/128))}, v{vDS}")
        a(f"s_mov_b32 s70, {hx(f2u(1e-30))}")
        a("v_max3_f32 v32, v32, abs(v33), s70")
        for sh in (8, 4, 2, 1):
            a(f"v_max_f32_dpp v32, v32, v32 row_ror:{sh} row_mask:0xf bank_mask:0xf")
        a("v_mov_b32 v33, v32\nv_permlane16_swap_b32 v32, v33\nv_max_f32 v32, v32, v33")
        a("v_mov_b32 v33, v32\nv_permlane32_swap_b32 v32, v33\nv_max_f32 v32, v32, v33")
        a("v_frexp_exp_i32_f32 v32, v32")
        a(f"v_sub_u32 v33, 7, v32\nv_subrev_u32 v32, {7+SK}, v32")
        a("v_ldexp_f32 v33, 1.0, v33")
        a(f"v_ldexp_f32 v32, v{vDT}, v32")
        for j in range(3):
            b = PR + 6 * j
            a(f"v_mul_f32 v{b+2}, v{40+2*j}, v33\nv_mul_f32 v{b+3}, v{41+2*j}, v33")
        a("v_readfirstlane_b32 s82, v32")
        ACC = 28
        a(f"v_mul_f32 v{vDS}, v{vDS}, v33")
        a("v_cmp_eq_u32 vcc, 0, v0")
        for r in range(ACC + 1, ACC + 12): a(f"v_mov_b32 v{r}, 0")
        a(f"v_cndmask_b32 v{ACC}, 0, v{vDS}, vcc")
        VV = 40
        val = {n: VV + 2 * (i - 2) for n, i in ridx.items() if i >= 2}
        val["a0"] = PR + 2
        TM = 82
        PK = 84
        FX, FY = [108, 140, 172, 204], [124, 156, 188, 220]
        FA = 40
        def direct(dst, mult):
            out = []
            if mult == 1:
                out += [f"v_exp_f32 v{TM}, v{PR}", f"v_fract_f32 v{TM+1}, v{PR+1}"]
            else:
                out += [f"v_mul_f32 v{TM}, {hx(f2u(mult))}, v{PR}", f"v_mul_f32 v{TM+1}, {hx(f2u(mult))}, v{PR+1}",
                        f"v_exp_f32 v{TM}, v{TM}", f"v_fract_f32 v{TM+1}, v{TM+1}"]
            out += [f"v_cos_f32 v{dst}, v{TM+1}", f"v_sin_f32 v{dst+1}, v{TM+1}",
                    f"v_mul_f32 v{dst}, v{dst}, v{TM}", f"v_mul_f32 v{dst+1}, v{dst+1}, v{TM}"]
            return out
        def tables():
            out = direct(val["z1"], 1) + direct(val["z64"], 64.0)
            for d, x, y in (("z2", "z1", "z1"), ("z128", "z64", "z64"), ("z3", "z2", "z1"), ("z4", "z2", "z2"), ("z192", "z128", "z64"),
                            ("g1", "z128", "z128"), ("z8", "z4", "z4"), ("g2", "g1", "g1"), ("z12", "z8", "z4"), ("z16", "z8", "z8"),
                            ("g3", "g2", "g1"), ("g4", "g2", "g2"), ("a1", "a0", "z16"), ("g1p", "g1", "z2"), ("g5", "g4", "g1"),
                            ("a2", "a1", "z16"), ("g6", "g4", "g2"), ("g7", "g4", "g3"), ("a3", "a2", "z16")):
                out += self.cmul(val[d], val[x], val[y], val[d]) if self.o.get("kpk", 1) else self.cmul4(val[d], val[x], val[y])
            for n, i in ridx.items():
                if i: out.append(f"v_cvt_pk_f16_f32 v{PK+i-1}, v{val[n]}, v{val[n]+1}")
            for k in range(4): out.append(f"v_mov_b32 v{PR+k}, v{PR+6+k}")
            for k in range(4): out.append(f"v_mov_b32 v{PR+6+k}, v{PR+12+k}")
            return out
        lg = Q(a, "lgkmcnt", 15)
        def fread(t):
            for ks in range(0 if self.o.get("nokr") else 4):
                a(f"ds_read_b128 {v(FX[t]+4*ks,4)}, v{FADR+2*t} offset:{16*ks}"); lg.add(("f", t))
                a(f"ds_read_b128 {v(FY[t]+4*ks,4)}, v{FADR+2*t+1} offset:{16*ks}"); lg.add(("f", t))
        def fmul(t):
            x, y = FX[t], FY[t]
            d = FA + 16 * t
            neg = " neg_hi:[1,0,1]" if t == 0 else ""
            for q in range(0, 16, 2):
                for e in range(2):
                    a(f"v_pk_mul_f16 v{d+q+e}, v{x+q+e}, v{y+q+e} op_sel_hi:[0,1]")
                for e in range(2):
                    a(f"v_pk_fma_f16 v{d+q+e}, v{x+q+e}, v{y+q+e}, v{d+q+e} op_sel:[1,1,0] op_sel_hi:[1,0,1] neg_lo:[0,1,0]{neg}")
        def mfmas(t):
            for ks in range(0 if self.o.get("nokm") else 4):
                a(f"v_mfma_f32_16x16x32_f16 {v(ACC+4*(t-1),4)}, {v(FA+4*ks,4)}, {v(FX[t]+4*ks,4)}, {v(ACC+4*(t-1),4)}")
        a("s_mov_b32 s83, 3")
        a(".Lktab:")
        for l in tables(): a(l)
        for i in range(1, 23):
            if not self.o.get("nokw"): a(f"ds_write_addtid_b32 v{PK+i-1} offset:{784*i}")
        a("s_add_u32 m0, m0, 256")
        a("s_sub_u32 s83, s83, 1\ns_cmp_lg_u32 s83, 0\ns_cbranch_scc1 .Lktab")
        self.stamp(6)
        for t in range(4): fread(t)
        a("s_mov_b32 s83, 3")
        a(".Lkgen:")
        for t in range(4):
            a("s_waitcnt lgkmcnt(15)" if t < 2 else "s_waitcnt lgkmcnt(15)")
            a(f"v_add_u32 v{FADR+2*t}, 256, v{FADR+2*t}\nv_add_u32 v{FADR+2*t+1}, 256, v{FADR+2*t+1}")
            fmul(t)
            fread(t)
        def kmf():
            for ks in range(0 if self.o.get("nokm") else 4):
                for t in range(1, 4):
                    a(f"v_mfma_f32_16x16x32_f16 {v(ACC+4*(t-1),4)}, {v(FA+4*ks,4)}, {v(FA+16*t+4*ks,4)}, {v(ACC+4*(t-1),4)}")
        kmf()
        a("s_sub_u32 s83, s83, 1\ns_cmp_lg_u32 s83, 1\ns_cbranch_scc1 .Lkgen")
        a(f"s_lshl_b32 s70, s{sWAVE}, 2\nv_mov_b32 v104, 1\nv_mov_b32 v105, s70")
        a(f"ds_write_b32 v105, v104 offset:{L_KDONE-4}")
        for t in range(4):
            a(f"s_waitcnt lgkmcnt({min(15, 25 - 8 * t)})")
            fmul(t)
        kmf()
        self.stamp(2)
        if self.o.get("only1"):
            self.prof_out(7); a("s_endpgm"); return
        a("v_mov_b32 v40, 0\nv_mov_b32 v41, 0")
        a("v_lshrrev_b32 v42, 2, v0\nv_mul_u32_u24 v42, 288, v42\nv_and_b32 v43, 3, v0\nv_lshl_add_u32 v42, v43, 3, v42\nv_add_u32 v42, s79, v42")
        for t in range(3):
            a(f"v_cvt_pk_f16_f32 v{44+2*t}, v{ACC+4*t+3}, v{ACC+4*t+2}")
            a(f"v_cvt_pk_f16_f32 v{45+2*t}, v{ACC+4*t+1}, v{ACC+4*t}")
        kw = [(42, 40, 256), (vKA0, 44, 0)]
        nr = 200
        a(f"v_mov_b32 v{nr}, v{vKA0}"); kw[1] = (nr, 44, 0); nr += 1
        for t, (va, vl) in enumerate(((vKA1, vKL1), (vKA2, vKL2))):
            for e in range(reps[t]):
                if e == 0: a(f"v_mov_b32 v{nr}, v{va}")
                else: a(f"v_add_u32 v{nr}, {288*e}, v{va}\nv_min_u32 v{nr}, v{nr}, v{vl}")
                kw.append((nr, 46 + 2 * t, 0)); nr += 1
        vKR, vSH, vUR = 1, 2, 3
        KS = [136, 72, 8, 136]
        UB = 232
        NU = 6
        Y = 200 + 0
        SO = 72
        CH = self.o.get("ch", 4)
        if CH > 1: KS, UB, NU, SO = [136, 72, 136, 72], 8, 16, 232
        a("v_and_b32 v4, 15, v0\nv_lshrrev_b32 v5, 4, v0")
        a("v_sub_u32 v6, 15, v4")
        a(f"s_sub_u32 s77, s{sWAVE}, 1\ns_mul_i32 s77, s77, {KB_STRIDE}\ns_add_u32 s77, s77, {L_KB}\ns_sub_u32 s70, s77, s79")
        a(f"v_and_b32 v{vSH}, 1, v6\nv_mul_lo_u32 v{vSH}, v{vSH}, s70")
        a(f"v_lshrrev_b32 v6, 1, v6\nv_lshl_add_u32 v6, v6, 2, v{vSH}")
        a(f"v_mul_u32_u24 v7, 288, v5\nv_add3_u32 v{vKR}, v6, v7, s79")
        a("v_lshl_add_u32 v50, v0, 4, s79\nv_lshl_add_u32 v51, v0, 4, s77")
        a("v_sub_u32 v6, v4, v5\nv_add_u32 v6, 4, v6")
        a(f"v_mul_u32_u24 v6, 272, v6\nv_add_u32 v{vUR}, s78, v6")
        def kload(ks):
            out = []
            for d in range(0, 64, 2):
                out.append(f"ds_read2_b32 {v(ks+d,2)}, v{vKR} offset0:{d} offset1:{d+1}")
            return out
        def kalign(ks):
            return [f"v_alignbyte_b32 v{ks+d}, v{ks+d+1 if d < 63 else 7}, v{ks+d}, v{vSH}" for d in range(64)]
        self.get_tag(4, 5)
        a("v_and_b32 v6, 7, v0\nv_lshrrev_b32 v5, 3, v0\nv_mul_u32_u24 v5, 10240, v5\nv_lshl_add_u32 v6, v6, 4, v5")
        a("s_lshr_b32 s70, s76, 6\ns_and_b32 s71, s76, 63")
        a("s_sub_u32 s72, s70, 8\ns_lshl_b32 s72, s72, 2\ns_and_b32 s73, s76, 3\ns_add_u32 s72, s72, s73")
        a("s_lshr_b32 s73, s71, 2\ns_add_u32 s73, s73, 64")
        a("s_cmp_ge_u32 s76, 512\ns_cselect_b32 s74, s72, s70\ns_cselect_b32 s75, s73, s71")
        a(f"s_mul_i32 s72, s74, {32*10240}\ns_lshl_b32 s73, s75, 7\ns_add_u32 s72, s72, s73\ns_add_u32 s72, s72, {SG}")
        a(f"v_mov_b32 v52, s82\nv_mov_b32 v53, s72\nv_mov_b32 v54, 1\ns_lshl_b32 s70, s{sWAVE}, 4\nv_mov_b32 v55, s70")
        if self.o.get("lsl", 0): self.lds_wait(L_DF + 4 * 7, 60, 61, name="k7", sleep=8)
        L = a.label("k9"); E = a.label("k9e")
        a("v_and_b32 v61, 3, v0\nv_mul_u32_u24 v61, 80, v61\ns_mov_b32 s71, 0x200000")
        a(f"{L}:\nds_read_b32 v60, v61 offset:{L_DF+36}\ns_waitcnt lgkmcnt(0)\nv_cmp_eq_u32 vcc, 0, v60\ns_cbranch_vccz {E}\ns_sleep 1\ns_sub_u32 s71, s71, 1\ns_cbranch_scc0 {L}\n{E}:")
        if self.o.get("kgate", 9) == 0:
            a(f"s_lshl_b32 s73, s{sWAVE}, 4")
            self.lds_wait("s73", 60, 61, cmp="ge", val="11", name="wg", sleep=1)
        a(f"s_setprio {self.o.get('kprio2', 0)}")
        for w in range(3): assert L_KT + w * KT_STRIDE <= L_SSM + w * SSM_STRIDE + L_KOFF and L_SSM + w * SSM_STRIDE + L_KOFF + 4608 <= L_KT + (w + 1) * KT_STRIDE
        for va, d, off in kw: a(f"ds_write_b64 v{va}, {v(d,2)} offset:{off}")
        for k in range(5):
            a(f"ds_read_b128 {v(8+8*k,4)}, v50 offset:{1024*k}\nds_read_b32 v{12+8*k}, v50 offset:{1024*k+16}")
        for k in range(5):
            a(f"s_waitcnt lgkmcnt({8-2*k+k})")
            for d in range(4): a(f"v_alignbyte_b32 v{8+8*k+d}, v{9+8*k+d}, v{8+8*k+d}, 2")
            if k == 4: a("s_mov_b32 exec_hi, 0")
            a(f"ds_write_b128 v51, {v(8+8*k,4)} offset:{1024*k}")
        a("s_mov_b32 exec_hi, -1")
        C4 = self.o.get("c4", 0)
        if C4: a(f"ds_write_b96 v55, v[52:54] offset:{L_KI-16}")
        if self.o.get("kig", 0): a(f"v_lshrrev_b32 v55, 2, v55\nds_write_b32 v55, v54 offset:{L_KDEAD-4}")
        NPRE = self.o.get("npre", 1)
        for G in range(NPRE):
            for l in kload(KS[G]): a(l)
            a(f"v_add_u32 v{vKR}, 1152, v{vKR}")
        self.lds_wait(L_URDY, 4, 5, name="u", sleep=1)
        lg = Q(a, "lgkmcnt", 15)
        mf = [(G, beta, tau) for G in range(4) for b0 in range(0, 16, CH) for tau in range(8) for beta in range(b0, b0 + CH) if beta <= 2 * tau + 1 and not (C4 and tau in (2, 3))]
        GL = len(mf) // 4
        first = {}; last = {}
        for i, (G, beta, tau) in enumerate(mf):
            first.setdefault(G * 16 + beta, i); last[G * 16 + beta] = i
        nu = [0]
        def uread():
            u = nu[0]; G, beta = divmod(u, 16)
            a(f"ds_read_b128 {v(UB+4*(u%NU),4)}, v{vUR} offset:{(3-G)*1088+16*beta}"); lg.add(("u", u)); nu[0] += 1
        for _ in range(4 if CH == 1 else 6): uread()
        if self.o.get("cgate", 1):
            a(f"s_lshl_b32 s73, s{sWAVE}, 4")
            self.lds_wait("s73", 4, 5, cmp="ge", val="12", name="cg", sleep=1); lg.clear()
        self.stamp(3)
        a(f"s_lshl_b32 s73, s{sWAVE}, 2\nv_mov_b32 v4, 1\nv_mov_b32 v5, s73")
        a(f"s_setprio {self.o.get('cprio', 0)}")
        started = set()
        epi = []
        bg = []
        for G in range(NPRE, 4):
            e = (GL if G == 3 else 0) if CH == 1 else GL * (G - 1)
            kl = kload(KS[G])
            kl[-1] += f"\nv_add_u32 v{vKR}, 1152, v{vKR}"
            bg += [(e, GL * G - 8, l, ("k", G)) for l in kl]
        bg += [(2 * GL, 3 * GL, l, None) for l in [f"s_lshr_b32 s70, s{sTAG}, {2*k}\ns_lshl_b32 s70, s70, 13\nv_mov_b32 v{SO+8+k}, s70" for k in range(4)] + ["s_mov_b32 s83, 0x60006000"]]
        if CH > 1: bg.sort(key=lambda x: (x[3] is not None, x[1])); bg = [(0 if x[3] is None else x[0],) + x[1:] for x in bg]
        lastk = [0]
        for i, (G, beta, tau) in enumerate(mf):
            cur = KS[G]
            u = G * 16 + beta
            assert nu[0] > u
            lg.wait(("u", u))
            lg.wait(("k", G))
            f = 2 * tau - beta + 1
            cin = v(Y + 4 * tau, 4) if tau in started else "0"
            started.add(tau)
            a(f"v_mfma_f32_16x16x32_f16 {v(Y+4*tau,4)}, {v(cur+(15-f)*4,4)}, {v(UB+4*(u%NU),4)}, {cin}")
            slots = 2
            if nu[0] < 64 and (nu[0] < NU or last[nu[0] - NU] <= i) and first[nu[0]] - i <= (14 if CH == 1 else 20):
                uread(); slots -= 1
            n = 0
            while slots > 0 and bg and bg[0][0] <= i:
                e, dl, l, kind = bg[0]
                left = sum(1 for x in bg if x[1] <= dl)
                if (n or slots == 1) and left <= (dl - i) * 0.72 - 6: break
                if kind and kind[0] == "a":
                    if i < lastk[0] + 6: break
                    lg.wait(("k", kind[1]))
                a(l); bg.pop(0); slots -= 1; n += 1
                if kind and kind[0] == "k":
                    lg.add(kind); lastk[0] = i
                    if "ds_write" in l: lg.add("w")
            assert not bg or bg[0][1] > i + 1, (i, bg[0])
            if G == 3:
                if beta == 2 * tau + 1:
                    y = Y + 4 * tau; e = tau % 2; so = SO + (4 if tau // 2 == (2 if C4 else 1) or (tau // 2 == 3 and not C4) else 0)
                    ops = [f"v_mul_f32 v{y+k}, s82, v{y+k}" for k in range(4)]
                    ops += [f"v_cvt_pk_bf16_f32 v{so+2*e+k}, v{y+2*k}, v{y+2*k+1}" for k in range(2)]
                    ops += [f"v_bfi_b32 v{so+2*e+k}, s83, v{SO+8+2*e+k}, v{so+2*e+k}" for k in range(2)]
                    if e: ops.append(f"buffer_store_dwordx4 {v(so,4)}, v6, {srd(S_WS)}, s72 offen sc1" + (f"\ns_add_u32 s72, s72, {8*10240*(2 if (C4 and tau == 1) else 1)}" if tau < 7 else ""))
                    epi.append((i + 8, ops))
                while slots > 0 and epi and epi[0][0] <= i:
                    a(epi[0][1].pop(0)); slots -= 1
                    if not epi[0][1]: epi.pop(0)
        a(f"ds_write_b32 v5, v4 offset:{L_SDONE-4}")
        self.stamp(4)
        for _, ls in epi:
            for l in ls: a(l)
        self.stamp(5)
        self.prof_out(7)
        a("s_endpgm")

    def bar_post(self, val, vt, lg):
        a = self.a
        a(f"v_mov_b32 v{vt}, {val}")
        a(f"ds_write_b32 v{self.vPW}, v{vt}"); lg.add("pw")
        a(f"ds_read_b32 v{vt+1}, v{self.vPR}"); lg.add("pr")

    def bar_check(self, val, vt, lg):
        a = self.a
        R = a.label("br"); B = a.label("bb")
        lg.wait("pr")
        a(f"v_cmp_gt_u32 vcc, {val}, v{vt+1}")
        a(f"s_cbranch_vccnz {R}")
        a(f"{B}:")
        self.ool.append(f"""{R}:
        s_mov_b32 s71, 0x400000
        {R}l:
        ds_read_b32 v{vt+1}, v{self.vPR}
        s_waitcnt lgkmcnt(0)
        v_cmp_gt_u32 vcc, {val}, v{vt+1}
        s_cbranch_vccz {B}
        s_sub_u32 s71, s71, 1
        s_cbranch_scc0 {R}l
        s_branch {B}""")

    def retry(self, body, cond, sleep, lim="0x20000"):
        a = self.a
        if self.o.get("solo") and sleep: return
        R = a.label("rt"); B = a.label("rb")
        a(f"s_cbranch_vccnz {R}")
        a(f"{B}:")
        sl = f"s_sleep {sleep}\n" if sleep else ""
        self.ool.append(f"{R}:\ns_mov_b32 s71, {lim}\n{R}l:\n{sl}{body}\n{cond}\ns_cbranch_vccz {B}\ns_sub_u32 s71, s71, 1\ns_cbranch_scc0 {R}l\ns_branch {B}")

    def mlp(self):
        a = self.a
        o = self.o
        a(".Lmlp0:")
        self.role = "mlp"
        if o.get("nomlp"):
            a("s_waitcnt lgkmcnt(0)\ns_barrier\ns_endpgm"); return
        sM, sROT, sXB, sWB, sXL, sWL, sDF, sORD = 72, 74, 75, 76, 77, 78, 79, 0
        vm = Q(a, "vmcnt", 63); lg = Q(a, "lgkmcnt", 15)
        if o.get("cpf", 1): vm.add("c")
        vXo, vWo = 1, 5
        self.vPW, self.vPR = 8, 9
        vXR, vWR = 10, 14
        vT = 18
        vZ, vFL = 23, 31
        STV = 24
        vL, vL4 = 28, 29
        ACC = 32
        BUF = [80, 144]
        vSA, vFA, vCA, vBA, vHA, FW, B1, PT, SEL, CSA = 208, 209, 210, 211, 212, 213, 216, 220, 232, 240
        a(f"s_sub_u32 s{sM}, s{sWAVE}, 4")
        a("v_bfe_u32 v18, v0, 3, 2\nv_lshrrev_b32 v19, 5, v0\nv_lshl_add_u32 v18, v19, 8, v18")
        a(f"v_mul_u32_u24 v18, 1280, v18")
        a("v_and_b32 v20, 7, v0\nv_lshlrev_b32 v19, 2, v19\nv_xor_b32 v19, v19, v20")
        a(f"v_lshl_add_u32 v{vXo}, v19, 4, v18")
        for u in range(1, 4):
            a(f"v_xor_b32 v21, {16*u}, v{vXo}\nv_add_u32 v{vXo+u}, {u*(20480-1024)}, v21")
        a(f"s_lshr_b32 s70, s{sT1}, 2\ns_lshl_b32 s70, s70, 7\ns_and_b32 s71, s{sT1}, 3\ns_lshl_b32 s71, s71, 4\ns_add_u32 s70, s70, s71")
        a(f"s_add_u32 s70, s70, s{sM}\ns_mul_i32 s{sXB}, s70, {4*1280}")
        ords = {0: ["0412385679", "1052349678", "2016345789", "3012745689"],
                1: ["0241536789", "1032465879", "0123745689"[::1], "1023456978"],
                2: ["0415236789", "1502634789"[::1], "2016374589", "3012478569"],
                3: ["0123456789"] * 4,
                4: ["0213546879", "1032457698"[::1], "0124365879", "1023465789"],
                5: ["0314256789", "1203564789"[::1], "2013475689", "0123486579"]}[o.get("ord", 0)]
        for x in ords: assert sorted(x) == list("0123456789"), x
        oc = [sum(int(ch) << (3 * 0 + 4 * i) for i, ch in enumerate(x)) for x in ords]
        a(f"s_add_u32 s70, s{sT1}, s{sC1}")
        a(f"s_mov_b32 s85, {hx(oc[0])}\ns_mov_b32 s86, {hx(oc[2])}\ns_bitcmp1_b32 s70, 0\ns_cselect_b32 s85, {hx(oc[1])}, s85\ns_cselect_b32 s86, {hx(oc[3])}, s86")
        a(f"s_bitcmp1_b32 s70, 1\ns_cselect_b32 s{sORD}, s86, s85")
        hi = sum((oc[k] >> 32) << (8 * k) for k in range(4))
        a(f"s_and_b32 s70, s70, 3\ns_lshl_b32 s70, s70, 3\ns_lshr_b32 s{sORD+1}, {hx(hi)}, s70")
        if o.get("rot", 0):
            a(f"s_mul_i32 s70, s{sT1}, 3\ns_add_u32 s70, s70, s{sC1}\ns_mul_i32 s71, s70, 6554\ns_lshr_b32 s71, s71, 16\ns_mul_i32 s71, s71, 10\ns_sub_u32 s70, s70, s71")
            a(f"s_lshl_b32 s70, s70, 2\ns_sub_u32 s71, 40, s70\ns_mov_b32 s84, 0x76543210\ns_mov_b32 s85, 0x98")
            a(f"s_lshr_b64 s[0:1], s[84:85], s70\ns_lshl_b64 s[84:85], s[84:85], s71\ns_or_b64 s[0:1], s[0:1], s[84:85]")
        a(f"s_and_b32 s{sROT}, s{sORD}, 15")
        a(f"s_mul_i32 s{sXL}, s{sM}, 12288\ns_add_u32 s{sXL}, s{sXL}, {L_X}")
        def dma(c):
            res = []
            for u in range(4):
                pre = f"s_add_u32 m0, s{sXL}, {(c%3)*4096}\ns_lshl_b32 s87, s{sROT}, 7\ns_add_u32 s87, s87, s{sXB}\n" if u == 0 else ""
                res.append((pre + f"buffer_load_dwordx4 v{vXo+u}, {srd(S_X)}, s87 offen offset:{u*1024} lds", ("d", c)))
            for t in range(3):
                pre = f"s_add_u32 m0, s{sWL}, {(c%5)*12288}\ns_mul_i32 s87, s{sROT}, {64*3072}\ns_add_u32 s87, s87, s{sWB}\n" if t == 0 else ""
                res.append((pre + f"buffer_load_dwordx4 v{vWo+t}, {srd(S_W1)}, s87 offen offset:{t*1024} lds", ("d", c)))
            res.append((f"s_add_u32 m0, s{sDF}, {4*c}\ns_mov_b64 exec, 1\nglobal_load_lds_dword v{vZ}, s[38:39]\ns_mov_b64 exec, -1\n"
                        f"s_lshr_b64 s[{sORD}:{sORD+1}], s[{sORD}:{sORD+1}], 4\ns_and_b32 s{sROT}, s{sORD}, 15", ("d", c)))
            return res
        dq = []
        def dnext(n=1):
            for _ in range(n):
                if dq:
                    l, tg = dq.pop(0)
                    if callable(l): l()
                    else: a(l); vm.add(tg)
        dq += dma(0) + dma(1)
        a(f"v_lshrrev_b32 v18, 2, v0\nv_mul_u32_u24 v18, 3072, v18\nv_and_b32 v19, 3, v0\nv_lshl_add_u32 v18, v19, 4, v18")
        for t in range(3):
            a(f"v_add_u32 v{vWo+t}, {2048 + t*64 - t*1024}, v18")
        a(f"s_mul_i32 s{sWB}, s{sC1}, 192\ns_mul_i32 s70, s{sM}, {16*3072}\ns_add_u32 s{sWB}, s{sWB}, s70")
        a(f"s_mul_i32 s{sDF}, s{sM}, 80\ns_add_u32 s{sDF}, s{sDF}, {L_DF}")
        a(f"v_mov_b32 v{vZ}, 0")
        a(f"s_mul_i32 s{sWL}, s{sM}, 3072\ns_add_u32 s{sWL}, s{sWL}, {L_W}")
        a("s_waitcnt lgkmcnt(0)")
        self.stamp(1, True)
        self.srds(["u", "w2", "ws"])
        a(f"s_sub_u32 s{S_W1}, s{P['w1']}, 2048\ns_subb_u32 s{S_W1+1}, s{P['w1']+1}, 0\ns_mov_b32 s{S_W1+2}, {1966080+2048}\ns_mov_b32 s{S_W1+3}, 0x20000")
        dnext(o.get("pre", 0))
        a("s_barrier")
        self.stamp(2, True)
        a(f"s_setprio {o.get('prio', 1)}")
        dq += dma(2)
        dnext(o.get("n0", 8))
        RW, WF2 = 220, 248
        a("s_min_u32 s82, s2, 239")
        a("s_mul_i32 s80, s82, 52429\ns_lshr_b32 s80, s80, 18")
        a("s_mul_i32 s81, s80, 5\ns_sub_u32 s81, s82, s81")
        a(f"s_mul_i32 s82, s80, {32*1280}\ns_lshl_b32 s83, s81, 8\ns_add_u32 s82, s82, s83")
        a(f"s_lshr_b32 s83, s{sM}, 1\ns_lshl_b32 s83, s83, 7\ns_add_u32 s82, s82, s83\ns_and_b32 s83, s{sM}, 1\ns_lshl_b32 s83, s83, 2\ns_add_u32 s82, s82, s83\ns_add_u32 s83, s82, {8*1280}")
        a("v_lshrrev_b32 v18, 5, v0\nv_bfe_u32 v19, v0, 4, 1\nv_lshl_add_u32 v18, v18, 2, v19")
        a(f"v_mul_u32_u24 v18, {4*1280}, v18\nv_and_b32 v19, 15, v0\nv_lshl_add_u32 v18, v19, 3, v18")
        a("v_mov_b32 v30, v18\ns_mov_b64 s[56:57], s[82:83]")
        a(f"v_and_b32 v{self.vPR}, 3, v0\nv_mul_u32_u24 v{vFL}, 80, v{self.vPR}")
        a(f"v_bfe_u32 v18, v0, 3, 2\nv_and_b32 v19, 4, v0\nv_add_u32 v18, v18, v19\nv_lshl_add_u32 v18, v{self.vPR}, 3, v18")
        a("v_lshrrev_b32 v19, 5, v0\nv_and_b32 v20, 7, v0\nv_xor_b32 v19, v19, v20")
        a(f"v_lshl_add_u32 v18, v18, 7, s{sXL}")
        a("v_lshrrev_b32 v21, 5, v0\nv_lshlrev_b32 v21, 9, v21\nv_bfe_u32 v22, v0, 2, 2\nv_lshl_add_u32 v21, v22, 6, v21")
        a(f"v_bfe_u32 v22, v0, 4, 1\nv_lshl_add_u32 v21, v22, 5, v21\nv_lshl_add_u32 v21, v{self.vPR}, 3, v21")
        for j in range(4):
            a(f"s_add_u32 s70, s{sM}, {j}\ns_and_b32 s70, s70, 3\ns_lshl_b32 s71, s70, 1")
            a(f"v_xor_b32 v20, s71, v19\nv_lshl_add_u32 v{vXR+j}, v20, 4, v18")
            a(f"s_mul_i32 s70, s70, 3072\ns_add_u32 s70, s70, {L_W}\nv_add_u32 v{vWR+j}, s70, v21")
        a("v_lshlrev_b32 v18, 2, v22\nv_and_b32 v19, 15, v0\nv_xor_b32 v18, v18, v19")
        a("v_mov_b32 v19, 0x3f803f80")
        for k in range(2):
            a(f"v_cmp_eq_u32 vcc, {8*k}, v18")
            for d in range(4): a(f"v_cndmask_b32 v{SEL+4*k+d}, 0, v19, vcc")
        a(f"v_lshlrev_b32 v{vL}, 4, v0")
        a(f"s_lshr_b32 s70, s{sM}, 1\ns_lshl_b32 s82, s81, 1\ns_add_u32 s82, s82, s70\ns_mul_i32 s82, s82, {48*5*1024}")
        a(f"s_and_b32 s70, s{sM}, 1\ns_lshl_b32 s70, s70, 11\ns_add_u32 s82, s82, s70")
        a(f"s_mul_i32 s83, s{sM}, {2*48*5*1024}\ns_add_u32 s83, s83, 4096")
        a(f"s_movk_i32 s70, 1024\ns_cmp_eq_u32 s81, 4\ns_cselect_b32 s82, s83, s82\ns_cselect_b32 s83, {48*5*1024}, s70")
        a(f"s_mul_i32 s70, s80, 5120\ns_add_u32 s82, s82, s70\ns_add_u32 s82, s82, {W2F}\ns_add_u32 s83, s83, s82")
        a(f"s_lshl_b32 s70, s2, 2\ns_add_u32 s70, s70, s{sM}\ns_lshl_b32 s70, s70, 12\ns_add_u32 s70, s70, {DUMMY - 960 * 4096}\ns_add_u32 s71, s70, 1024")
        a("s_cmp_ge_u32 s2, 240\ns_cselect_b32 s58, s70, s82\ns_cselect_b32 s59, s71, s83")
        sWF = 3
        a("s_mul_i32 s82, s80, 86\ns_lshr_b32 s82, s82, 8\ns_mul_i32 s83, s82, 3\ns_sub_u32 s80, s80, s83")
        a("s_lshr_b32 s83, s82, 2\ns_mul_i32 s83, s83, 3\ns_add_u32 s80, s80, s83\ns_lshl_b32 s80, s80, 2")
        a(f"s_and_b32 s82, s82, 3\ns_mul_i32 s82, s82, 1280\ns_lshl_b32 s81, s81, 8\ns_add_u32 s81, s81, s82\ns_lshl_b32 s82, s{sM}, 6")
        a(f"s_add_u32 s81, s81, s82\ns_add_u32 s81, s81, s80\ns_add_u32 s{sWF}, s81, {FLAG_W}")
        a(f"s_add_u32 s70, s59, 1024\ns_cmp_ge_u32 s2, 240\ns_cselect_b32 s{sWF}, s70, s{sWF}")
        a(f"v_mov_b32 v{vT+2}, {L_TAG}")
        sWG, sHG, sSW, sSH = 4, 8, 14, 16
        sST, sFW, sHS, sHF, sPW, sP3 = 83, 73, 80, 81, 18, 19
        sub = Gen(o); sub.a = Asm(); sub.ids2()
        late = [l.replace("s71", "s12") for l in sub.a.lines]
        def LL(txt, atomic=False):
            if atomic: late.append(txt)
            else: late.extend(txt.split("\n"))
        a(f"v_and_b32 v{vBA}, 31, v0\ns_mul_i32 s70, s{sC1}, 192\nv_lshl_add_u32 v{FW}, v{vBA}, 1, s70")
        LL(f"s_lshl_b32 s70, s{sM}, 4\nv_mov_b32 v{self.vPW}, s70\nv_lshlrev_b32 v{self.vPR}, 4, v{self.vPR}\nv_add_u32 v{vL4}, 4096, v{vL}")
        LL(f"v_lshlrev_b32 v{vBA}, 4, v{vBA}\nv_add_u32 v{vBA}, {L_PART}, v{vBA}")
        LL(f"v_bfe_u32 v{vSA}, v0, 3, 2\nv_lshlrev_b32 v{vSA}, 7, v{vSA}\nv_bfe_u32 v22, v0, 2, 1\nv_lshl_add_u32 v{vSA}, v22, 12, v{vSA}\nv_and_b32 v22, 3, v0\nv_lshl_add_u32 v{vSA}, v22, 4, v{vSA}")
        LL(f"s_lshr_b32 s70, s{sT1}, 2\ns_lshl_b32 s70, s70, 13\ns_and_b32 s12, s{sT1}, 2\ns_lshl_b32 s12, s12, 10\ns_add_u32 s70, s70, s12\n"
           f"s_and_b32 s12, s{sT1}, 1\ns_lshl_b32 s12, s12, 6\ns_add_u32 s70, s70, s12\ns_lshl_b32 s12, s{sM}, 9\ns_add_u32 s70, s70, s12\ns_add_u32 s{sST}, s70, {STATS}")
        LL(f"s_lshl_b32 s70, s{sC2}, 7\nv_and_b32 v22, 16, v0\nv_lshl_add_u32 v22, v22, 2, s70\ns_lshr_b32 s70, s{sC2}, 1\ns_lshl_b32 s70, s70, 6\ns_addk_i32 s70, 1024\nv_mov_b32 v{FW}, s70")
        LL(f"v_cmp_gt_u32 vcc, 32, v0\nv_and_b32 v{vFA}, 15, v0\nv_min_u32 v{vFA}, 11, v{vFA}\nv_cndmask_b32 v22, v{FW}, v22, vcc", True)
        LL(f"v_lshl_add_u32 v{vFA}, v{vFA}, 2, v22")
        LL(f"s_mul_i32 s{sFW}, s{sM}, 1280\ns_add_u32 s{sFW}, s{sFW}, {FLAG_W}\ns_lshl_b32 s70, s{sM}, 2\ns_add_u32 s70, s70, {L_PART}\nv_lshl_add_u32 v{vCA}, v0, 4, s70")
        NEED6 = len(late)
        if o.get("rer"): o["mt"] = 1
        LL(f"s_mul_i32 s12, s{sC2}, {48*5120}\ns_mul_i32 s70, s{sM}, 15360\ns_add_u32 s12, s12, s70\ns_add_u32 s12, s12, {W2F}\ns_and_b32 s82, s{sT2}, {o.get('mt', 3)}\ns_and_b32 s70, s{sC2}, {o.get('mc', 0)}\ns_xor_b32 s82, s82, s70")
        if o.get("rer"): LL(f"s_and_b32 s70, s2, 1\ns_lshl_b32 s70, s70, 1\ns_xor_b32 s82, s82, s70")
        for gi in range(4):
            LL(f"s_xor_b32 s70, s82, {gi}\ns_mul_i32 s70, s70, {4*15360}\ns_add_u32 s{sWG+gi}, s12, s70")
        LL(f"v_bfe_u32 v22, v0, 4, 1\nv_lshlrev_b32 v22, 10, v22\nv_lshrrev_b32 v{vHA}, 5, v0\nv_lshl_add_u32 v22, v{vHA}, 8, v22\nv_and_b32 v{vHA}, 15, v0\nv_lshl_add_u32 v{vHA}, v{vHA}, 4, v22")
        LL(f"s_lshl_b32 s70, s{sT1}, 1\ns_lshr_b32 s12, s{sM}, 1\ns_add_u32 s86, s70, s12\ns_mul_i32 s{sHS}, s86, 48\ns_mul_i32 s70, s{sC1}, 3\ns_add_u32 s{sHS}, s{sHS}, s70\ns_lshl_b32 s{sHS}, s{sHS}, 12\n"
           f"s_and_b32 s70, s{sM}, 1\ns_lshl_b32 s70, s70, 11\ns_add_u32 s{sHS}, s{sHS}, s70\ns_add_u32 s{sHS}, s{sHS}, {HG}")
        k1 = -2 * math.sqrt(2 / math.pi) * math.log2(math.e)
        LL(f"s_mov_b32 s84, {hx(f2u(k1 * 0.044715))}\ns_mov_b32 s85, {hx(f2u(k1))}")
        NLATE = len(late)
        def lnext(n):
            for _ in range(n):
                if late: a(late.pop(0))
        def post_gelu_setup():
            a(f"s_lshl_b32 s{sHF}, s86, 2\ns_and_b32 s70, s{sC1}, 3\ns_add_u32 s{sHF}, s{sHF}, s70\ns_lshl_b32 s{sHF}, s{sHF}, 7\n"
              f"s_lshr_b32 s70, s{sC1}, 2\ns_lshl_b32 s70, s70, 1\ns_and_b32 s12, s{sM}, 1\ns_add_u32 s70, s70, s12\ns_lshl_b32 s70, s70, 2\n"
              f"s_add_u32 s{sHF}, s{sHF}, s70\ns_add_u32 s{sHF}, s{sHF}, {FLAG_H}")
            a(f"s_mul_i32 s{sPW}, s{sM}, 11264\ns_add_u32 s{sPW}, s{sPW}, {L_PW}\ns_mul_i32 s{sP3}, s{sM}, 3072\ns_add_u32 s{sP3}, s{sP3}, {RING}")
            a(f"s_mul_i32 s12, s{sT2}, {48*4096}\ns_mul_i32 s70, s{sM}, 12288\ns_add_u32 s12, s12, s70\ns_add_u32 s12, s12, {HG}")
            for gi in range(4):
                a(f"s_xor_b32 s70, s82, {gi}\ns_mul_i32 s70, s70, {4*12288}\ns_add_u32 s{sHG+gi}, s12, s70")
            a(f"s_lshl_b32 s17, s{sM}, 12\ns_add_u32 s17, s17, {L_W}")
            self.srds(["out"])
            a("s_mov_b32 s15, s72")
            self.ids_ssm()
            a("s_mov_b32 s72, s15")

        NREG = 28
        WP = 96
        wreg = {f: WP + 4 * f for f in range(NREG)}
        park = {}
        xs = [30 + k for k in range(12)]
        for k, f in enumerate(xs): park[f] = (sXL, ((k // 4 + 1) % 3) * 4096 + (k % 4) * 1024)
        NPK2 = o.get("npk2", 54)
        sP4 = 17
        rest = [28, 29] + list(range(42, NPK2))
        for k, f in enumerate(rest): park[f] = (sPW, k * 1024) if k < 11 else (sP3, (k - 11) * 1024) if k < 14 else (sP4, (k - 14) * 1024)
        cur = {"p": None, "m": None}
        def wload(f, dst=None):
            p, ct = divmod(f, 5)
            txt = ""
            so = f"s{sWG + p // 3}"
            if p % 3:
                if cur["p"] != p: txt += f"s_add_u32 s13, s{sWG + p // 3}, {(p % 3) * 5120}\n"; cur["p"] = p
                so = "s13"
            va, imm = (vL4, 0) if ct == 4 else (vL, ct * 1024)
            if dst is None:
                m = (park[f][0], park[f][1] - imm)
                if cur["m"] != m: txt = f"s_add_u32 m0, s{m[0]}, {m[1]}\n" + txt; cur["m"] = m
                txt += f"buffer_load_dwordx4 v{va}, {srd(S_WS)}, {so} offen offset:{imm} sc1 lds"
            else:
                txt += f"buffer_load_dwordx4 {v(dst,4)}, v{va}, {srd(S_WS)}, {so} offen offset:{imm} sc1"
            a(txt); vm.add(("w", f))

        def reads(c):
            b = BUF[c % 2]
            out = []
            for j in range(4):
                out.append((f"ds_read_b128 {v(b+4*j,4)}, v{vXR+j} offset:{(c%3)*4096}", ("r", c, j)))
                for t in range(3):
                    for h in range(2):
                        out.append((f"ds_read_b64_tr_b16 {v(b+16+(j*3+t)*4+2*h,2)}, v{vWR+j} offset:{(c%5)*12288+t*1024+h*256}", ("r", c, j)))
            return out
        def fl_read(c):
            a(f"ds_read_b32 v{vT+1}, v{vFL} offset:{L_DF+4*c}"); lg.add("pr")
        def fl_check(c):
            lg.wait("pr")
            cond = f"v_cmp_eq_u32 vcc, 0, v{vT+1}"
            a(cond)
            self.retry(f"ds_read_b32 v{vT+1}, v{vFL} offset:{L_DF+4*c}\ns_waitcnt lgkmcnt(0)", cond, o.get("fsl", 0), "0x400000")
        tagcond = f"v_readfirstlane_b32 s{sTAG}, v{vT+3}\nv_cmp_ne_u32 vcc, v{vT+3}, v%d\ns_cmp_eq_u32 s{sTAG}, 0\ns_cselect_b64 vcc, -1, vcc"
        for e in range(0 if o.get("now2") else 8):
            a(f"buffer_load_dword v{RW+e}, v30, {srd(S_W2)}, s{56+e//4} offen offset:{(e%4)*1280}"); vm.add("w2")
        for t in range(3):
            a(f"global_load_ushort v{B1+t}, v{FW}, {sp(P['b1'])} offset:{64*t}"); vm.add("w2")
        dnext(o.get("n1", 8))
        a("s_mov_b32 s56, 0x05040100\ns_mov_b32 s57, 0x07060302")
        def w2fmt(ct):
            vm.wait("w2")
            for d in range(4):
                a(f"v_perm_b32 v{WF2+4*ct+d}, v{RW+2*d+1}, v{RW+2*d}, s{56+ct}")
            a(f"buffer_store_dwordx4 {v(WF2+4*ct,4)}, v{vL}, {srd(S_WS)}, s{58+ct} offen sc1"); vm.add("ws")
        FMC = o.get("fmc", 0)
        if FMC < 0 and not o.get("now2"): w2fmt(0); w2fmt(1)
        dnext(o.get("n2", 0))
        vm.wait(("d", 0))
        self.stamp(3, True)
        fl_read(0)
        dnext(2)
        fl_check(0)
        for k, (l, tg) in enumerate(reads(0)):
            a(l); lg.add(tg)
            if k % 4 == 3: dnext()
        dnext(99)
        self.stamp(7)
        PK0 = o.get("pk0", 8)
        wl = list(range(NREG)) + xs + rest
        nearly = [0]
        def avail(f):
            r = wreg[f]; c = 8 if r < BUF[1] else 9; x = r - BUF[c % 2]
            return (c, x // 4 if x < 16 else (x - 16) // 12)
        for c in range(10):
            b = BUF[c % 2]
            if c == 9: self.stamp(8)
            self.stamp(4 + c, True)
            rd = reads(c + 1) if c < 9 else []
            for j in range(4):
                lg.wait(("r", c, j))
                if j == 0 and not o.get("nodot"):
                    for t in (0, 2, 1):
                        acc = CSA + 4 * (t // 2)
                        a(f"v_mfma_f32_16x16x32_bf16 {v(acc,4)}, {v(SEL+4*(t%2),4)}, {v(b+16+t*4,4)}, {'0' if (c == 0 and t != 1) else v(acc,4)}")
                for t in range(3):
                    cin = "0" if (c == 0 and j == 0) else v(ACC + 16 * t, 16)
                    if o.get("fake16"):
                        for e in range(2):
                            ac = ACC + 16 * t + 8 * (j % 2) + 4 * e
                            a(f"v_mfma_f32_16x16x32_bf16 {v(ac,4)}, {v(b+16+(j*3+t)*4,4)}, {v(b+4*((j&2)+e if j % 2 else j),4)}, {v(ac,4)}")
                    elif o.get("nomfma"): pass
                    else: a(f"v_mfma_f32_32x32x16_bf16 {v(ACC+16*t,16)}, {v(b+16+(j*3+t)*4,4)}, {v(b+4*j,4)}, {cin}")
                    if j == 0:
                        if t == 0 and c == o.get("wfc", 3): a(f"ds_read_b32 v{vT+3}, v{vT+2}"); lg.add("tag")
                        if t == 0 and c < 9: fl_read(c + 1)
                        if c == FMC and t and not o.get("now2"): w2fmt(t - 1)
                        else: lnext(5)
                    if c >= PK0 and (c, j) > (PK0, 0) and nearly[0] < o.get("nearly", 14):
                        assert not late, len(late)
                        ok = [f for f in wl if f < NREG and avail(f) < (c, j)]
                        if ok: wl.remove(ok[0]); wload(ok[0], wreg[ok[0]]); nearly[0] += 1
                    if j:
                        dnext()
                        for _ in range(4 if t == 0 else 3):
                            if rd:
                                l, tg = rd.pop(0); a(l); lg.add(tg)
                if j == 0:
                    assert not dq
                    if c + 3 < 10: dq += dma(c + 3)
                    if c < 9: fl_check(c + 1)
                    if c == o.get("wfc", 3):
                        cond = f"v_cmp_eq_u32 vcc, 0, v{vT+3}"
                        a(cond)
                        self.retry(f"ds_read_b32 v{vT+3}, v{vT+2}\ns_waitcnt lgkmcnt(0)", cond, 1, "0x200000")
                        a(f"v_readfirstlane_b32 s{sTAG}, v{vT+3}")
                        vm.wait("ws")
                        a(f"s_mov_b64 exec, 1\nbuffer_store_dword v{vT+3}, off, {srd(S_WS)}, s{sWF} sc1\ns_mov_b64 exec, -1"); vm.add("wf")
                    if c == PK0:
                        vm.wait("fw")
                        cond = f"v_cmp_ne_u32 vcc, s{sTAG}, v{FW}"
                        a(cond)
                        self.retry(f"buffer_load_dword v{FW}, v{vFA}, {srd(S_WS)}, s{sFW} offen sc1\ns_waitcnt vmcnt(0)", cond, 8)
                    if c == 9:
                        vm.wait("st")
                        cond = f"v_cmp_ne_u32 vcc, s{sTAG}, v{STV+3}"
                        a(cond)
                        self.retry(f"buffer_load_dwordx4 {v(STV,4)}, v{vSA}, {srd(S_WS)}, s{sST} offen sc1\ns_waitcnt vmcnt(0)", cond, 4)
                        a(f"ds_write_b32 v{vCA}, v{CSA}"); lg.add("cs")
                        a("s_mov_b32 exec_hi, 0")
                        a(f"ds_write_b32 v{vCA}, v{CSA+4} offset:1024"); lg.add("cs")
                        a("s_mov_b32 exec_hi, -1")
                        a(f"v_mov_b32 v{vT}, 11")
                        a(f"ds_write_b32 v{self.vPW}, v{vT}"); lg.add("pw")
                if c == 9 and j == 1:
                    a(f"ds_read_b32 v{vT+1}, v{self.vPR}"); lg.add("pr")
                if c == 9 and j == 2:
                    self.bar_check(11, vT, lg)
                    for t in range(3):
                        a(f"ds_read_b128 {v(PT+4*t,4)}, v{vBA} offset:{512*t}"); lg.add(("pt", t))
            assert not rd
            if c == o.get("fwc", 6):
                assert NLATE - len(late) >= NEED6
                a(f"buffer_load_dword v{FW}, v{vFA}, {srd(S_WS)}, s{sFW} offen sc1"); vm.add("fw")
            if c == o.get("stc", 6):
                a(f"buffer_load_dwordx4 {v(STV,4)}, v{vSA}, {srd(S_WS)}, s{sST} offen sc1"); vm.add("st")
        dnext(99)
        self.stamp(1)
        if o.get("only1"):
            self.prof_out(14); a("s_endpgm"); return
        a("s_mov_b32 vcc_lo, 0\ns_mov_b32 vcc_hi, -1")
        a(f"v_cndmask_b32 v{STV+1}, v{STV+1}, v{STV+2}, vcc")
        for t in range(3):
            lg.wait(("pt", t))
            a(f"v_add_f32 v{PT+4*t}, v{PT+4*t}, v{PT+4*t+1}\nv_add_f32 v{PT+4*t+2}, v{PT+4*t+2}, v{PT+4*t+3}")
            a(f"v_lshlrev_b32 v{B1+t}, 16, v{B1+t}")
            a(f"v_add_f32 v{PT+4*t}, v{PT+4*t}, v{PT+4*t+2}")
            a(f"v_cndmask_b32 v{PT+4*t}, v{PT+4*t}, v{B1+t}, vcc")
        for t in range(3):
            a(f"v_mfma_f32_32x32x2_f32 {v(ACC+16*t,16)}, v{PT+4*t}, v{STV+1}, {v(ACC+16*t,16)}")
        a(f"v_mul_f32 v20, v{STV}, v{STV}\nv_mul_f32 v21, s85, v{STV}\nv_mul_f32 v20, v20, v{STV}\nv_mul_f32 v20, s84, v20")
        self.stamp(2)
        done12 = [False]
        side = []
        def wnext(n=1):
            for _ in range(n):
                if wl:
                    f = wl.pop(0)
                    if f == xs[0] and o.get("ugate", 1):
                        self.lds_wait(L_URDY, vT + 1, vT + 2, name="ug", sleep=1); lg.clear()
                        if o.get("kig", 0): self.kdone_wait(vT + 1, vT + 2, L_KDEAD, 13); cur["p"] = None
                    if f == rest[0]:
                        assert done12[0]
                        a(f"ds_read_b32 v{vT+1}, v{self.vPR}"); lg.add("pr")
                        self.bar_check(12, vT, lg)
                        if not o.get("ugate", 1): self.kdone_wait(vT + 1, vT + 2); lg.clear()
                    if f == 54:
                        self.kdone_wait(vT + 1, vT + 2, L_KDEAD); lg.clear()
                    wload(f, wreg.get(f))
                    for _ in range(4):
                        if side: a(side.pop(0))
        ZS = [80, 224, 240]
        wg = o.get("wg", 1)
        NPK = o.get("npk", 3)
        def pre(t):
            A, Z = ACC + 16 * t, ZS[t]
            for p in range(0, 16, 2):
                a(f"v_pk_mul_f32 {v(Z+p,2)}, {v(A+p,2)}, {v(A+p,2)}")
            for p in range(0, 16, 2):
                a(f"v_pk_fma_f32 {v(Z+p,2)}, {v(Z+p,2)}, v[20:21], v[20:21] op_sel:[0,0,1] op_sel_hi:[1,0,1]")
            for p in range(0, 16, 2):
                a(f"v_pk_mul_f32 {v(Z+p,2)}, {v(Z+p,2)}, {v(A+p,2)}")
        def release():
            a(f"v_mov_b32 v{vT}, 12")
            a(f"ds_write_b32 v{self.vPW}, v{vT}"); lg.add("pw")
            self.stamp(9)
        def post(t, pk):
            A, Z = ACC + 16 * t, ZS[t]
            if wg > 0: wnext()
            for p in range(16):
                a(f"v_exp_f32 v{Z+p}, v{Z+p}")
            if wg > 1: wnext()
            for p in range(0, 16, 2):
                if pk: a(f"v_pk_fma_f32 {v(Z+p,2)}, {v(Z+p,2)}, {v(STV+2,2)}, {v(STV+2,2)} op_sel_hi:[1,0,0]")
                else: a(f"v_fma_f32 v{Z+p}, v{Z+p}, v{STV+2}, v{STV+2}\nv_fma_f32 v{Z+p+1}, v{Z+p+1}, v{STV+2}, v{STV+2}")
            for hf in range(2):
                for p in range(8 * hf, 8 * hf + 8):
                    a(f"v_rcp_f32 v{Z+p}, v{Z+p}")
                for p in range(8 * hf, 8 * hf + 8, 2):
                    if pk: a(f"v_pk_mul_f32 {v(Z+p,2)}, {v(A+p,2)}, {v(Z+p,2)}")
                    else: a(f"v_mul_f32 v{Z+p}, v{A+p}, v{Z+p}\nv_mul_f32 v{Z+p+1}, v{A+p+1}, v{Z+p+1}")
                if NPK == 3 and t == 2 and hf == 1: release()
                for p in range(8 * hf, 8 * hf + 8, 2):
                    a(f"v_cvt_pk_bf16_f32 v{A+8*hf+(p%8)//2}, v{Z+p}, v{Z+p+1}")
                a(f"buffer_store_dwordx4 {v(A+8*hf,4)}, v{vHA}, {srd(S_WS)}, s{sHS} offen offset:{512*hf} sc1"); vm.add("hs")
            if t < 2: a(f"s_add_u32 s{sHS}, s{sHS}, 4096")
        for t in range(NPK):
            pre(t); post(t, True)
        for t in range(NPK, 3): pre(t)
        if NPK < 3: release()
        for t in range(NPK, 3): post(t, False)
        done12[0] = True
        self.stamp(10)
        wnext(o.get("wafter", 6))
        post_gelu_setup()
        a(f"v_mov_b32 v{vT}, s{sTAG}")
        vm.wait("hs")
        a("s_mov_b64 exec, 1")
        a(f"buffer_store_dword v{vT}, off, {srd(S_WS)}, s{sHF} sc1"); vm.add("hf")
        a("s_mov_b64 exec, -1")
        self.stamp(3)
        def SS(txt): side.extend(txt.replace("s70", "s16").replace("s71", "s12").split("\n"))
        SS("v_and_b32 v2, 15, v0\nv_bfe_u32 v3, v0, 4, 1\nv_lshrrev_b32 v13, 5, v0\nv_lshl_add_u32 v13, v3, 8, v13")
        SS("v_mul_u32_u24 v13, 1280, v13\nv_lshl_add_u32 v13, v2, 3, v13")
        SS(f"s_lshr_b32 s73, s{sT2}, 3\ns_lshl_b32 s73, s73, 9\ns_and_b32 s70, s{sT2}, 6\ns_lshl_b32 s70, s70, 5\ns_add_u32 s73, s73, s70")
        SS(f"s_and_b32 s70, s{sT2}, 1\ns_lshl_b32 s70, s70, 3\ns_add_u32 s73, s73, s70\ns_lshl_b32 s70, s{sM}, 1\ns_add_u32 s73, s73, s70\ns_mul_i32 s73, s73, 1280")
        SS(f"s_lshl_b32 s75, s{sC2}, 7")
        SS(f"s_lshr_b32 s70, s{sC2}, 2\ns_lshl_b32 s70, s70, 7\ns_and_b32 s71, s{sC2}, 3\ns_lshl_b32 s71, s71, 1\ns_add_u32 s76, s70, s71\ns_add_u32 s76, s76, 1024")
        sRow = [20, 24]
        for i in range(4):
            SS(f"s_add_u32 s70, s73, {i*20480}\ns_add_u32 s{sRow[0]+i}, s70, s75\ns_add_u32 s{sRow[1]+i}, s70, s76") if not o.get("prof") else None
        if o.get("prof"): sRow = None
        SS("s_add_u32 s87, s73, s75\ns_add_u32 s78, s73, s76")
        side.append(f"s_add_u32 s{P['b2']}, s{P['b2']}, s75\ns_addc_u32 s{P['b2']+1}, s{P['b2']+1}, 0\ns_sub_u32 s76, s76, s75")
        SS("v_lshlrev_b32 v15, 3, v2")
        for k in range(1, 4):
            SS(f"s_sub_u32 s70, s{sM}, {k}\ns_and_b32 s70, s70, 3\ns_mul_i32 s70, s70, {12288 if k < 3 else 11264}\ns_add_u32 s{83+k}, s70, {L_X + (k-1)*5120 if k < 3 else L_PW}")
        SS(f"s_lshl_b32 s70, s{sM}, 5\ns_add_u32 s83, s70, {L_SSM}\ns_movk_i32 s82, 528")
        def rowregs(i):
            if sRow: return f"s{sRow[0]+i}", f"s{sRow[1]+i}"
            a(f"s_add_u32 s70, s87, {i*20480}\ns_add_u32 s71, s78, {i*20480}")
            return "s70", "s71"
        if o.get("c4", 0): side.append(f"s_cmp_gt_u32 s{sM}, s{sNCH}\ns_cselect_b32 s75, 0, 1\ns_mov_b32 s73, s{sM}")
        else: side.append(f"s_cmp_gt_u32 s{sM}, s{sNCH}\ns_cselect_b32 s73, 0, s{sM}\ns_min_u32 s75, s73, 1")
        SS(f"s_lshl_b32 s73, s73, 2\ns_add_u32 s73, s73, {L_SDONE-4}")
        if o.get("rer"):
            for t in range(3):
                a(f"s_sub_u32 s13, s{sHS}, {(2-t)*4096}")
                for hf in range(2): a(f"buffer_load_dwordx4 v[32:35], v{vL}, {srd(S_WS)}, s13 offen offset:{1024*hf} sc1"); vm.add("rr")
            cur["p"] = None
        wnext(len(wl) - o.get("wtail", 6))
        a(f"s_lshl_b32 s74, s{sT2}, 2\ns_add_u32 s74, s74, s{sM}\ns_lshl_b32 s74, s74, 7\ns_add_u32 s74, s74, {FLAG_H}")
        poll = f"s_buffer_load_dwordx8 s[48:55], {srd(S_WS)}, s74 glc"
        a(poll)
        wnext(99)
        while side: a(side.pop(0))
        self.stamp(11)
        vH = 4
        for T in range(4):
            a(f"s_add_u32 s70, s{sM}, {T}\ns_and_b32 s70, s70, 3\ns_lshl_b32 s70, s70, 10\nv_add_u32 v{vH+T}, s70, v{vL}")
        vPk = {sXL: 10, sPW: 11, sP3: 12}
        for sb, r in vPk.items(): a(f"v_add_u32 v{r}, s{sb}, v{vL}")
        vPk[sP4] = 15
        a(f"v_mov_b32 v1, v{vL}\nv_mov_b32 v14, v{vL4}")
        vL, vL4 = 1, 14
        a(f"s_mov_b32 s14, s{sTAG}\ns_mov_b32 s15, s{sTAG}")
        cond = "s_waitcnt lgkmcnt(0)\n" + "\n".join(f"s_xor_b64 s[{r}:{r+1}], s[{r}:{r+1}], s[14:15]" for r in (48, 50, 52, 54))
        cond += "\ns_or_b64 s[48:49], s[48:49], s[50:51]\ns_or_b64 s[52:53], s[52:53], s[54:55]\ns_or_b64 vcc, s[48:49], s[52:53]"
        a(cond); lg.clear()
        self.retry(poll, cond, o.get("hsleep", 1), "0x40000")
        self.stamp(4)
        self.stamp(1, 2)
        ACC2 = 16
        free = [208 + 4 * i for i in range(12)]
        hreg = {}
        st = {"h": 0, "w": NREG, "ks": None}
        def issue_h():
            nh = st["h"]; r = free.pop(0); hreg[nh] = r
            ks = nh // 4
            so = f"s{sHG + ks // 3}"
            if ks % 3:
                if st["ks"] != ks: a(f"s_add_u32 s12, s{sHG + ks // 3}, {(ks % 3) * 4096}"); st["ks"] = ks
                so = "s12"
            if not (o.get("fakeh") and nh >= 12):
                a(f"buffer_load_dwordx4 {v(r,4)}, v{vH + nh % 4}, {srd(S_WS)}, {so} offen sc1"); vm.add(("h", nh))
            st["h"] += 1
        def issue_w():
            nw = st["w"]; r = free.pop(0); wreg[nw] = r
            vm.wait(("w", nw))
            a(f"ds_read_b128 {v(r,4)}, v{vPk[park[nw][0]]} offset:{park[nw][1]}"); lg.add(("w", nw))
            st["w"] += 1
        lateW = list(range(NPK2, 60))
        NHP = o.get("nhp", 0)
        dummy = free.pop() if NHP else None
        while free and st["h"] < 48: issue_h()
        if NHP:
            a(f"s_and_b32 s70, s{sC2}, 3\ns_lshl_b32 s70, s70, 10\nv_add_u32 v2, s70, v{vL}")
            for ks in range(3, 3 + NHP):
                a(f"s_add_u32 s13, s{sHG + ks // 3}, {(ks % 3) * 4096}")
                a(f"buffer_load_dwordx4 {v(dummy,4)}, v2, {srd(S_WS)}, s13 offen sc1"); vm.add("hpf")
            cur["p"] = None
            free.append(dummy)
            issue_h()
        hd = o.get("hdepth", 6)
        fill = []
        NT = o.get("ntail", 2)
        for ks in range(12 - NT):
            if ks == o.get("xks", 6):
                X4a, X4b, X1, B2 = free.pop(0), free.pop(0), free.pop(0), free.pop(0)
                X4 = [X4a, X4a + 2, X4b, X4b + 2]
                def xl(i, k):
                    if o.get("nox"): return
                    r = rowregs(i)
                    if k: a(f"buffer_load_ushort v{X1+i}, v13, {srd(S_X)}, {r[1]} offen")
                    else: a(f"buffer_load_dwordx2 {v(X4[i],2)}, v13, {srd(S_X)}, {r[0]} offen")
                    vm.add("x")
                for i in range(4): fill += [lambda i=i: xl(i, 0), lambda: None, lambda i=i: xl(i, 1), lambda: None]
                fill.append(lambda: (a(f"global_load_dwordx2 {v(B2,2)}, v15, {sp(P['b2'])}\nv_add_u32 v15, s76, v15"), vm.add("x")))
                fill.append(lambda: (a(f"global_load_ushort v{B2+2}, v15, {sp(P['b2'])}"), vm.add("x")))
            if ks == o.get("g2gate", 1):
                while len(free) > 1 and st["h"] < 48 and st["h"] < 4 * (ks + hd): issue_h()
                self.lds_wait("s73", 2, 3, cmp="ge", val="s75", name="pg", sleep=o.get("pgsleep", 1)); lg.clear()
            self.stamp(2 + ks, 2)
            for ct in range(5):
                f = 5 * ks + ct
                if f in park: lg.wait(("w", f))
                else: vm.wait(("w", f))
                for T in range(4):
                    if ct == 0: vm.wait(("h", 4 * ks + T))
                    c = ACC2 + (T * 5 + ct) * 4
                    a(f"v_mfma_f32_16x16x32_bf16 {v(c,4)}, {v(hreg[4*ks+T],4)}, {v(wreg[f],4)}, {'0' if ks == 0 else v(c,4)}")
                    if T % 2 == 0 and len(free) > 1 and st["w"] < NPK2 and st["w"] < 5 * (ks + 1) + 3 + ct + (8 if ks >= 8 else 0): issue_w()
                    elif T % o.get("hmod", 4) == 1 and len(free) > 1 and st["h"] < 48 and st["h"] < 4 * (ks + hd): issue_h()
                    elif T % 2 == 1 and len(free) > 1 and lateW and ks >= o.get('lwks', 3):
                        f2 = lateW.pop(0); wreg[f2] = free.pop(0)
                        if not o.get("nolate"): wload(f2, wreg[f2])
                    elif fill: fill.pop(0)()
                free.append(wreg[f])
            for T in range(4): free.append(hreg[4 * ks + T])
            if ks == 2: self.stamp(13)
            assert o.get("sgate", 7) <= 7
            if ks == o.get("sgate", 7):
                a(f"v_mov_b32 v2, 13")
                a(f"ds_write_b32 v{self.vPW}, v2"); lg.add("pw")
            if ks == 7:
                assert st["h"] == 48 and not lateW, (st, lateW)
                for k in range(1, 4):
                    fill.append(lambda k=k: a(f"v_add_u32 v{3+k}, s{83+k}, v{vL}"))
                fill.append(lambda: a(f"v_lshrrev_b32 v3, 4, v0\nv_lshl_add_u32 v3, v3, 3, s83"))
                fill.append(lambda: a("v_and_b32 v7, 15, v0\nv_mad_u32_u24 v2, v7, s82, v3"))
                fill.append(lambda: a("v_lshl_add_u32 v3, v7, 7, v3\nv_lshrrev_b32 v7, 2, v7"))
                fill.append(lambda: a(f"v_lshl_add_u32 v3, v7, 4, v3\nv_mov_b32 v7, {L_SRDY}"))
            if ks == 11 - NT:
                if o.get("xlate", 1): fill += [lambda: None] * o.get("xdel", 4)
                XFv, BF = [free.pop(0) for _ in range(5)], [free.pop(0) for _ in range(2)]
                fill.append(lambda: (vm.wait("x"), a("s_mov_b32 s79, 0xffff0000")))
                for i in range(4):
                    for d in range(2):
                        fill.append(lambda i=i, d=d: a(f"v_lshlrev_b32 v{XFv[2*d]+i}, 16, v{X4[i]+d}\nv_and_b32 v{XFv[2*d+1]+i}, s79, v{X4[i]+d}"))
                for i in (0, 2): fill.append(lambda i=i: a(f"v_lshlrev_b32 v{XFv[4]+i}, 16, v{X1+i}\nv_lshlrev_b32 v{XFv[4]+i+1}, 16, v{X1+i+1}"))
                fill.append(lambda: a(f"v_lshlrev_b32 v{BF[0]}, 16, v{B2}\nv_and_b32 v{BF[0]+1}, s79, v{B2}"))
                fill.append(lambda: a(f"v_lshlrev_b32 v{BF[0]+2}, 16, v{B2+1}\nv_and_b32 v{BF[0]+3}, s79, v{B2+1}"))
                fill.append(lambda: a(f"v_lshlrev_b32 v{BF[1]}, 16, v{B2+2}"))
        self.stamp(12, 2)
        while st["w"] < NPK2: issue_w()
        for f in range(5 * (12 - NT), 60):
            if f in park: lg.wait(("w", f))
            else: vm.wait(("w", f))
        wq = []
        n = 0
        for T in (1, 2, 3, 0):
            for ct in range(5):
                for ks in range(12 - NT, 12):
                    vm.wait(("h", 4 * ks + T))
                    c = ACC2 + (T * 5 + ct) * 4
                    a(f"v_mfma_f32_16x16x32_bf16 {v(c,4)}, {v(hreg[4*ks+T],4)}, {v(wreg[5*ks+ct],4)}, {v(c,4)}")
                    n += 1
                    if wq and wq[0][0] <= n and n % o.get("wmod", 2) == 0: a(wq.pop(0)[1]); lg.add("rw")
                    elif fill: fill.pop(0)()
                if T: wq.append((n + 6, f"ds_write_b128 v{vPk[sXL if T < 3 else sPW]}, {v(ACC2+(T*5+ct)*4,4)} offset:{((T-1)%2)*5120*(T<3)+ct*1024}"))
        for ks in range(12 - NT, 12): free += [hreg[4 * ks + T] for T in range(4)] + [wreg[5 * ks + ct] for ct in range(5)]
        while fill: fill.pop(0)()
        self.stamp(5); self.stamp(13, 2)
        for _, l in wq: a(l); lg.add("rw")
        vT = 14
        self.bar_post(14, vT, lg)
        Z = ACC2
        SV = [free.pop(0) for _ in range(3)]
        SVr = [SV[0], SV[0] + 2, SV[1], SV[1] + 2, SV[2]]
        SF = [free.pop(0) for _ in range(5)]
        for ct in range(5):
            for p in (0, 2):
                sel = "op_sel:[0,1] op_sel_hi:[1,1]" if ct % 2 else "op_sel_hi:[1,0]"
                b = BF[0] + (ct & ~1) if ct < 4 else BF[1]
                a(f"v_pk_add_f32 {v(Z+4*ct+p,2)}, {v(Z+4*ct+p,2)}, {v(b,2)} {sel}")
        self.bar_check(14, vT, lg)
        self.stamp(12)
        Pp = 36
        for k in range(1, 4):
            for ct in range(5):
                a(f"ds_read_b128 {v(Pp+(k-1)*20+ct*4,4)}, v{3+k} offset:{ct*1024}"); lg.add(("p", k))
        for k in range(1, 4):
            lg.wait(("p", k))
            for p in range(0, 20, 2):
                a(f"v_pk_add_f32 {v(Z+p,2)}, {v(Z+p,2)}, {v(Pp+(k-1)*20+p,2)}")
        EX = 36
        a(f"s_mov_b32 s72, {hx(f2u(-math.log2(math.e)))}\ns_mov_b32 s73, {hx(f2u(-float(SK)))}\ns_mov_b32 s74, {hx(f2u(2.0 ** -SK))}")
        for p in range(0, 20, 2): a(f"v_pk_fma_f32 {v(EX+p,2)}, {v(Z+p,2)}, s[72:73], s[72:73] op_sel:[0,0,1] op_sel_hi:[1,0,1]")
        for p in range(20): a(f"v_exp_f32 v{EX+p}, v{EX+p}")
        sread = "ds_read_b32 v12, v7\n" + "\n".join(f"ds_read_b64 {v(SVr[ct],2)}, v2 offset:{128*ct}" for ct in range(4)) + f"\nds_read_b64 {v(SVr[4],2)}, v3 offset:{16*528}"
        for p in range(0, 20, 2): a(f"v_pk_add_f32 {v(EX+p,2)}, {v(EX+p,2)}, s[74:75] op_sel_hi:[1,0]")
        for p in range(20):
            if p == 6: a(sread)
            a(f"v_rcp_f32 v{EX+p}, v{EX+p}")
        for p in range(0, 20, 2): a(f"v_pk_mul_f32 {v(Z+p,2)}, {v(Z+p,2)}, {v(EX+p,2)}")
        a("s_waitcnt lgkmcnt(0)")
        cond = "v_cmp_eq_u32 vcc, 0, v12"
        a(cond)
        self.retry(sread + "\ns_waitcnt lgkmcnt(0)", cond, 1, "0x200000")
        O = 60
        OF = ["", " sc1", " nt", " sc0 sc1"][o.get("of", 0)]
        for hf in range(2):
            for ct in range(5):
                a(f"v_lshlrev_b32 v{SF[ct]+2*hf}, 16, v{SVr[ct]+hf}\nv_and_b32 v{SF[ct]+2*hf+1}, s79, v{SVr[ct]+hf}")
            for ct in range(5):
                p = 4 * ct + 2 * hf
                a(f"v_pk_fma_f32 {v(Z+p,2)}, {v(Z+p,2)}, {v(SF[ct]+2*hf,2)}, {v(XFv[ct]+2*hf,2)}")
            a(f"v_cvt_pk_bf16_f32 v{O+8+hf}, v{Z+16+2*hf}, v{Z+17+2*hf}")
            for i in (2 * hf, 2 * hf + 1):
                a(f"v_cvt_pk_bf16_f32 v{O+2*i}, v{Z+i}, v{Z+4+i}")
                a(f"v_cvt_pk_bf16_f32 v{O+2*i+1}, v{Z+8+i}, v{Z+12+i}")
                r0, r1 = rowregs(i)
                a(f"buffer_store_dwordx2 {v(O+2*i,2)}, v13, {srd(S_OUT)}, {r0} offen{OF}")
                if not o.get("noshort"): a(f"buffer_store_short{'_d16_hi' if i % 2 else ''} v{O+8+i//2}, v13, {srd(S_OUT)}, {r1} offen{OF}")
        if o.get("drain"): a("s_waitcnt vmcnt(0)")
        self.stamp(6)
        if o.get("padto"):
            a(".Lpad:\ns_memrealtime s[96:97]\ns_waitcnt lgkmcnt(0)\ns_sub_u32 s96, s96, s100")
            if o.get("padst"): a("s_sub_u32 s97, s92, s100\ns_sub_u32 s96, s96, s97")
            a(f"s_cmp_lt_u32 s96, {o['padto']}\ns_cbranch_scc1 .Lpad")
        if o.get("dbgclk"):
            a("s_memtime s[94:95]\ns_memrealtime s[96:97]\ns_waitcnt lgkmcnt(0)")
            a("s_sub_u32 s94, s94, s98\ns_sub_u32 s96, s96, s100")
            a("s_and_b32 s70, s2, 0x1f\ns_cmp_lg_u32 s70, 0\ns_cbranch_scc1 .Lend")
            a("s_lshr_b32 s70, s2, 5\ns_lshl_b32 s70, s70, 3\nv_mov_b32 v1, s70\nv_mov_b32 v2, s94\nv_mov_b32 v3, s96")
            a(f"global_store_dwordx2 v1, v[2:3], {sp(P['dbg'])}")
        self.prof_out(14)
        a("s_endpgm")

    def build(self):
        self.prologue()
        self.helper()
        self.ssm()
        self.a(".Lend:")
        self.a("s_endpgm")
        for blk in self.ool: self.a(blk)
        lines, n = hazard.fix(self.a.lines, verbose=self.o.get("vnop"))
        if self.o.get("align", 1):
            import align
            lines, np_, nn = align.fix(lines)
            if self.o.get("vnop"): print("align: promoted", np_, "nops", nn)
        body = "\n".join(lines) + "\n.Lcode_end:\n"
        body = body.replace("CODE_LAST", f".Lcode_end-{KNAME}_kernel-64")
        ref = open("cdna_kernels/" + KNAME + ".s.ref").read().split("\n")
        hdr = [l for l in ref[:18]]
        hdr += """; @launch grid=(256,1,1) block=(512,1,1) lds=163840
;
; out = x + (conv(K, LN(x)) + LN(x)*Dskip) * silu(gelu(LN(LN(x)) @ w1 + b1) @ w2 + b2), one persistent launch,
; one 8-wave workgroup per CU (written with a generator script; every instruction below is hand-specified).
;   wave 0     : LayerNorm of 8 tokens (f32 statistics), publishes u = LN(x) (f16) and the row statistics; later gathers
;                u for the local channels into polyphase LDS tables and fetches the s tile for the epilogue
;   waves 1..3 : one channel each. K[l] = Re sum_n C*dt*B*exp(dt*A*l) at the 641 distinct bf16-rounded l, as an exact
;                factorisation exp(a(l1+l2)) = exp(a l1) exp(a l2) contracted over the 192 modes on the MFMA; then the
;                causal convolution as Toeplitz MFMA tiles (Dskip is folded into K[0])
;   waves 4..7 : GEMM1 on raw x (LDS-DMA rings); both LayerNorms are applied exactly afterwards:
;                LN(LN(x)) = (x-m)*r1*r2, r1 = rsqrt(v+eps), r2 = rsqrt(v*r1^2+eps), i.e. a rank-2 f32 update
;                (-m*colsum(w1) + b1/(r1*r2)) and a row scale; tanh-GELU; GEMM2 (split K over the waves); SiLU gate
; Hand-offs between workgroups go through d_ws with write-through stores and L1-bypassing loads; they carry a tag
; derived from an epoch word in d_ws (advanced once per launch), either in flag words or inside every 16-byte granule.
; All waits are bounded polls.""".split("\n")
        return file_text(hdr, [kernel_text(KNAME + "_kernel", body, 256, 102, 256)])

if __name__ == "__main__":
    opt = {}
    out = "k.s"
    for x in sys.argv[1:]:
        if "=" in x:
            k, w = x.split("=", 1)
            if k == "out": out = w
            else: opt[k] = int(w)
    open(out, "w").write(Gen(opt).build())
```
